```python
import torch

def _softmax(x, axis=-1):
    return torch.softmax(x, dim=axis)
def _gelu(x):
    return torch.nn.functional.gelu(x, approximate="tanh")
def _silu(x):
    return torch.nn.functional.silu(x)
def _sigmoid(x):
    return torch.sigmoid(x)
def _layernorm(x, axis=-1, eps=1e-5):
    m = x.mean(dim=axis, keepdim=True)
    v = x.var(dim=axis, keepdim=True, unbiased=False)
    return (x - m) / torch.sqrt(v + eps)
def _scatter_add(tgt, idx, src, axis=0):
    return tgt.clone().index_add_(axis, idx, src)
def _segment_sum(src, seg, n):
    out = torch.zeros((n,) + src.shape[1:], dtype=src.dtype)
    return out.index_add_(0, seg, src)
def _pad(x, pw):
    flat = tuple(v for pair in reversed(pw) for v in pair)
    return torch.nn.functional.pad(x, flat)

kernel_name = 'interleave_layers__linear_kernel_hedgehog__spectral_fnet__prompt'

def setup_inputs():

    _w = (lambda a: (lambda t: t.to(torch.bfloat16) if t.is_floating_point() else t)(torch.as_tensor(a)))
    def _A_setup():
        B, S, D, H = 1, 2048, 448, 16
        Dh = D // H
        return {
            "x": _w((lambda *s: torch.randn(*s, dtype=torch.bfloat16) * 0.4)(B, S, D)),
            "wqkv": _w((lambda *s: torch.randn(*s, dtype=torch.bfloat16) * 1.6)(D, 3 * D)),
            "w_phi": _w((lambda *s: torch.randn(*s, dtype=torch.bfloat16) * 1.6)(H, Dh, Dh) * (Dh ** -0.5)),
            "wo": _w((lambda *s: torch.randn(*s, dtype=torch.bfloat16) * 1.6)(D, D)),
        }
    _A_in = _A_setup()

    def _B_setup():
        B, S, D = 1, 2048, 448
        ns = torch.arange(S)[:, None] * torch.arange(S)[None, :]
        nd = torch.arange(D)[:, None] * torch.arange(D)[None, :]
        Ws_re = torch.cos(-2.0 * torch.pi * ns / S).to(float)
        Ws_im = torch.sin(-2.0 * torch.pi * ns / S).to(float)
        Wd_re = torch.cos(-2.0 * torch.pi * nd / D).to(float)
        Wd_im = torch.sin(-2.0 * torch.pi * nd / D).to(float)
        return {
            "x": _w((lambda *s: torch.randn(*s, dtype=torch.bfloat16) * 0.4)(B, S, D)),
            "dft_seq_re": _w(Ws_re),
            "dft_seq_im": _w(Ws_im),
            "dft_hid_re": _w(Wd_re),
            "dft_hid_im": _w(Wd_im),
        }
    _B_in = _B_setup()

    return {
        "A_x": _A_in["x"],
        "A_wqkv": _A_in["wqkv"],
        "A_w_phi": _A_in["w_phi"],
        "A_wo": _A_in["wo"],
        "B_x": _B_in["x"],
        "B_dft_seq_re": _B_in["dft_seq_re"],
        "B_dft_seq_im": _B_in["dft_seq_im"],
        "B_dft_hid_re": _B_in["dft_hid_re"],
        "B_dft_hid_im": _B_in["dft_hid_im"],
    }

def reference(A_x, A_wqkv, A_w_phi, A_wo, B_x, B_dft_seq_re, B_dft_seq_im, B_dft_hid_re, B_dft_hid_im):
    def _A_ref(x, wqkv, w_phi, wo):
        B, S, D = x.shape
        H = 16; Dh = D // H
        qkv = (lambda x, *d: x.permute(*d))((x @ wqkv).reshape(B, S, 3, H, Dh), 2, 0, 3, 1, 4)
        q, k, v = qkv[0], qkv[1], qkv[2]
        pq = torch.einsum("bhsd,hdf->bhsf", q, w_phi)
        pk = torch.einsum("bhsd,hdf->bhsf", k, w_phi)
        phi_q = torch.concatenate([_softmax(pq, axis=-1), _softmax(-pq, axis=-1)], axis=-1)
        phi_k = torch.concatenate([_softmax(pk, axis=-1), _softmax(-pk, axis=-1)], axis=-1)
        kv = torch.einsum("bhsf,bhsd->bhfd", phi_k, v)
        z  = torch.einsum("bhsf->bhf", phi_k)
        num = torch.einsum("bhqf,bhfd->bhqd", phi_q, kv)
        den = torch.einsum("bhqf,bhf->bhq", phi_q, z)[..., None] + 1e-6
        o = num / den
        return (lambda x, *d: x.permute(*d))(o, 0, 2, 1, 3).reshape(B, S, D) @ wo

    def _B_ref(x, dft_seq_re, dft_seq_im, dft_hid_re, dft_hid_im):
        a = torch.einsum("bsd,ed->bse", x, dft_hid_re)
        b = torch.einsum("bsd,ed->bse", x, dft_hid_im)
        y = torch.einsum("ts,bse->bte", dft_seq_re, a) - torch.einsum("ts,bse->bte", dft_seq_im, b)
        return y

    x = A_x
    x = x + _A_ref(_layernorm(x, axis=-1), A_wqkv, A_w_phi, A_wo)
    x = x + _B_ref(_layernorm(x, axis=-1), B_dft_seq_re, B_dft_seq_im, B_dft_hid_re, B_dft_hid_im)
    x = x + _A_ref(_layernorm(x, axis=-1), A_wqkv, A_w_phi, A_wo)
    x = x + _B_ref(_layernorm(x, axis=-1), B_dft_seq_re, B_dft_seq_im, B_dft_hid_re, B_dft_hid_im)
    return x
```

```python
import sys
S,D,H,DH=2048,448,16,28
SLOT={'x':0,'wqkv':8,'wphi':16,'wo':24,'sre':40,'sim':48,'hre':56,'him':64,'out':72,'ws':88}
SIZE={'x':S*D*2,'wqkv':D*3*D*2,'wphi':H*DH*DH*2,'wo':D*D*2,'sre':S*S*2,'sim':S*S*2,'hre':D*D*2,'him':D*D*2,'out':S*D*2,'ws':1<<28}
MB=1<<20
WS={'xn':0,'qkv':8*MB,'p':16*MB,'phi':24*MB,'kv':40*MB,'z':41*MB,'num':48*MB,'o':56*MB,'x1':64*MB,'a':72*MB,'b':80*MB,'x2':88*MB,'x3':96*MB,'den':104*MB,'ones':112*MB}
kernels=[]; launches=[]
def buf(name):
    if name in WS: return ('ws',WS[name])
    return (name,0)
def srd(lines,reg,name):
    b,off=buf(name)
    lines.append(f"s_load_dwordx2 s[{reg}:{reg+1}], s[0:1], {SLOT[b]}")
    return b,off
def srd_fin(lines,reg,name):
    b,off=buf(name)
    if off:
        lines.append(f"s_add_u32 s{reg}, s{reg}, {off}")
        lines.append(f"s_addc_u32 s{reg+1}, s{reg+1}, 0")
    lines.append(f"s_mov_b32 s{reg+2}, {SIZE[b]-off if b!='ws' else 8*MB}")
    lines.append(f"s_mov_b32 s{reg+3}, 0x20000")
def finish(name,lines,grid,vg=64):
    body="\n".join("    "+l if not l.endswith(":") else l for l in lines)
    kernels.append((name,body,vg))
def magic(n): return -(-(1<<32)//n)
def decomp(L,n1,n2):
    L+= [f"s_mov_b32 s30, {magic(n2)}","v_mul_hi_u32 v5, v1, s30",f"s_mov_b32 s31, {n2}","v_mul_lo_u32 v6, v5, s31","v_sub_u32 v4, v1, v6"]
    if n1==1:
        L+=["v_mov_b32 v2, v5","v_mov_b32 v3, 0"]
    else:
        L+= [f"s_mov_b32 s30, {magic(n1)}","v_mul_hi_u32 v2, v5, s30",f"s_mov_b32 s31, {n1}","v_mul_lo_u32 v6, v2, s31","v_sub_u32 v3, v5, v6"]
def addr(L,dst,st,base=0):
    L.append(f"v_mov_b32 v{dst}, {base*2}")
    for r,s in zip((2,3,4),st):
        if s:
            L+=[f"s_mov_b32 s30, {s*2}",f"v_mul_lo_u32 v6, v{r}, s30",f"v_add_u32 v{dst}, v{dst}, v6"]
def head(L,total):
    L+=[f"s_cmp_ge_u32 s2, {-(-total//256)}","s_cbranch_scc1 L_end_%s","s_lshl_b32 s3, s2, 8","v_add_u32 v1, s3, v0"]
def rnd(L,v):
    L.append(f"v_cvt_pk_bf16_f32 v{v}, v{v}, v{v}")
def gemm(name,n0,n1,n2,K,prods,out,ost,resid=None,obase=0,ones_b=False):
    total=n0*n1*n2; L=[]
    head(L,total)
    regs=[]
    r=8
    names=[]
    for p in prods: names+= [p[0],p[4]]
    names.append(out)
    if resid: names.append(resid)
    rmap=[]
    r=32
    for nm in names:
        srd(L,r,nm); rmap.append(r); r+=4
    L.append("s_waitcnt lgkmcnt(0)")
    for nm,rr in zip(names,rmap): srd_fin(L,rr,nm)
    decomp(L,n1,n2)
    L+= [f"s_mov_b32 s29, {total}","v_cmp_gt_u32 vcc, s29, v1","s_and_saveexec_b64 s[26:27], vcc","s_cbranch_execz L_end_%s"]
    U=4 if K%4==0 else 1
    if K%8==0: U=8
    for pi,(A,ast,ak,ab,B,bst,bk,bb,sign) in enumerate(prods):
        addr(L,10,ast,ab); addr(L,11,bst,bb)
        acc=12+pi
        L+=[f"v_mov_b32 v{acc}, 0","s_mov_b32 s28, 0",f"L_loop{pi}_%s:"]
        for u in range(U):
            L+=[f"s_mov_b32 s24, {u*ak*2}",f"buffer_load_ushort v{20+u}, v10, s[{rmap[2*pi]}:{rmap[2*pi]+3}], s24 offen"]
            if not ones_b:
                L+=[f"s_mov_b32 s25, {u*bk*2}",f"buffer_load_ushort v{30+u}, v11, s[{rmap[2*pi+1]}:{rmap[2*pi+1]+3}], s25 offen"]
        L+=[f"v_add_u32 v10, {U*ak*2}, v10",f"v_add_u32 v11, {U*bk*2}, v11","s_waitcnt vmcnt(0)"]
        for u in range(U):
            L+=[f"v_lshlrev_b32 v{20+u}, 16, v{20+u}"]
            if ones_b: L+=[f"v_add_f32 v{acc}, v{acc}, v{20+u}"]
            else: L+=[f"v_lshlrev_b32 v{30+u}, 16, v{30+u}",f"v_fmac_f32 v{acc}, v{20+u}, v{30+u}"]
        L+=[f"s_add_u32 s28, s28, {U}",f"s_cmp_lt_u32 s28, {K}",f"s_cbranch_scc1 L_loop{pi}_%s"]
        rnd(L,acc); L.append(f"v_lshlrev_b32 v{acc}, 16, v{acc}")
    if len(prods)==2:
        L+=["v_sub_f32 v12, v12, v13"]; rnd(L,12); L.append("v_lshlrev_b32 v12, 16, v12")
    addr(L,10,ost,obase)
    if resid:
        rr=rmap[-1]
        L+=[f"buffer_load_ushort v20, v10, s[{rr}:{rr+3}], 0 offen","s_waitcnt vmcnt(0)","v_lshlrev_b32 v20, 16, v20","v_add_f32 v12, v12, v20"]
    rnd(L,12)
    ro=rmap[2*len(prods)]
    L+=[f"buffer_store_short v12, v10, s[{ro}:{ro+3}], 0 offen","s_waitcnt vmcnt(0)","L_end_%s:","s_endpgm"]
    L=[l.replace("%s",name) for l in L]
    finish(name,L,0); return (name,-(-total//256))
def ln(name,src,dst):
    L=[]; total=S*64
    head(L,total)
    srd(L,32,src); srd(L,36,dst); L.append("s_waitcnt lgkmcnt(0)"); srd_fin(L,32,src); srd_fin(L,36,dst)
    L+=["v_lshrrev_b32 v2, 6, v1","v_and_b32 v3, 63, v1","v_mul_u32_u24 v10, 896, v2","v_lshlrev_b32 v4, 1, v3","v_add_u32 v10, v10, v4","v_lshlrev_b32 v3, 2, v3"]
    for i in range(7): L.append(f"buffer_load_ushort v{20+i}, v10, s[32:35], 0 offen offset:{128*i}")
    L.append("s_waitcnt vmcnt(0)")
    for i in range(7): L.append(f"v_lshlrev_b32 v{20+i}, 16, v{20+i}")
    def red(v):
        for m in (1,2,4,8,16,32):
            L.extend([f"v_xor_b32 v4, {m*4}, v3",f"ds_bpermute_b32 v5, v4, v{v}","s_waitcnt lgkmcnt(0)",f"v_add_f32 v{v}, v{v}, v5"])
    L.append("v_mov_b32 v12, v20")
    for i in range(1,7): L.append(f"v_add_f32 v12, v12, v{20+i}")
    red(12)
    import struct
    f=lambda x: hex(struct.unpack("<I",struct.pack("<f",x))[0])
    L.append(f"v_mul_f32 v12, {f(1/448)}, v12")
    L.append("v_mov_b32 v13, 0")
    for i in range(7): L+= [f"v_sub_f32 v{20+i}, v{20+i}, v12",f"v_fmac_f32 v13, v{20+i}, v{20+i}"]
    red(13)
    L+=[f"v_mul_f32 v13, {f(1/448)}, v13",f"v_add_f32 v13, {f(1e-5)}, v13","v_rsq_f32 v13, v13","s_nop 1"]
    for i in range(7):
        L.append(f"v_mul_f32 v{20+i}, v{20+i}, v13"); rnd(L,20+i)
        L.append(f"buffer_store_short v{20+i}, v10, s[36:39], 0 offen offset:{128*i}")
    L+=["s_waitcnt vmcnt(0)","L_end_%s:","s_endpgm"]
    L=[l.replace("%s",name) for l in L]; finish(name,L,0); return (name,total//256)
def softmax(name):
    L=[]; total=S*2*H
    head(L,total)
    srd(L,32,'p'); srd(L,36,'phi'); L.append("s_waitcnt lgkmcnt(0)"); srd_fin(L,32,'p'); srd_fin(L,36,'phi')
    L+=["v_mul_u32_u24 v10, 56, v1","v_mul_u32_u24 v11, 112, v1"]
    for i in range(28): L.append(f"buffer_load_ushort v{20+i}, v10, s[32:35], 0 offen offset:{2*i}")
    L.append("s_waitcnt vmcnt(0)")
    for i in range(28): L.append(f"v_lshlrev_b32 v{20+i}, 16, v{20+i}")
    for sg in (0,1):
        op="v_max_f32" if sg==0 else "v_min_f32"
        L.append("v_mov_b32 v12, v20")
        for i in range(1,28): L.append(f"{op} v12, v12, v{20+i}")
        L.append("v_mov_b32 v13, 0")
        for i in range(28):
            if sg==0: L.append(f"v_sub_f32 v{50+i}, v{20+i}, v12")
            else: L.append(f"v_sub_f32 v{50+i}, v12, v{20+i}")
            L+=[f"v_mul_f32 v{50+i}, 0x3fb8aa3b, v{50+i}",f"v_exp_f32 v{50+i}, v{50+i}","s_nop 0",f"v_add_f32 v13, v13, v{50+i}"]
        L+=["v_rcp_f32 v13, v13","s_nop 0"]
        for i in range(28):
            L.append(f"v_mul_f32 v{50+i}, v{50+i}, v13"); rnd(L,50+i)
            L.append(f"buffer_store_short v{50+i}, v11, s[36:39], 0 offen offset:{2*i+56*sg}")
        L.append("s_waitcnt vmcnt(0)")
    L+=["L_end_%s:","s_endpgm"]
    L=[l.replace("%s",name) for l in L]; finish(name,L,0,vg=96); return (name,total//256)
def divk(name):
    L=[]; total=S*D
    head(L,total)
    srd(L,32,'num'); srd(L,36,'den'); srd(L,40,'o'); L.append("s_waitcnt lgkmcnt(0)"); srd_fin(L,32,'num'); srd_fin(L,36,'den'); srd_fin(L,40,'o')
    decomp(L,1,28)
    L+=["v_lshlrev_b32 v10, 1, v1","v_lshlrev_b32 v11, 1, v2","buffer_load_ushort v20, v10, s[32:35], 0 offen","buffer_load_ushort v21, v11, s[36:39], 0 offen","s_waitcnt vmcnt(0)",
        "v_lshlrev_b32 v20, 16, v20","v_lshlrev_b32 v21, 16, v21","v_add_f32 v21, 0x358637bd, v21","v_rcp_f32 v21, v21","s_nop 0","v_mul_f32 v20, v20, v21"]
    rnd(L,20)
    L+=["buffer_store_short v20, v10, s[40:43], 0 offen","s_waitcnt vmcnt(0)","L_end_%s:","s_endpgm"]
    L=[l.replace("%s",name) for l in L]; finish(name,L,0); return (name,total//256)
def nopk(name):
    L=["s_endpgm"]; finish(name,L,0); return (name,256)

k_qkv=gemm('qkv_kernel',S,1,3*D,D,[('xn',(D,0,0),1,0,'wqkv',(0,0,1),3*D,0,1)],'qkv',(3*D,0,1))
k_pq=gemm('pq_kernel',S,H,DH,DH,[('qkv',(3*D,DH,0),1,0,'wphi',(0,DH*DH,1),DH,0,1)],'p',(2*D,DH,1))
k_pk=gemm('pk_kernel',S,H,DH,DH,[('qkv',(3*D,DH,0),1,D,'wphi',(0,DH*DH,1),DH,0,1)],'p',(2*D,DH,1),obase=D)
k_sm=softmax('sm_kernel')
k_kv=gemm('kv_kernel',H,56,DH,S,[('phi',(56,1,0),4*D,2*D,'qkv',(DH,0,1),3*D,2*D,1)],'kv',(56*DH,DH,1))
k_z=gemm('z_kernel',1,1,H*56,S,[('phi',(0,0,1),4*D,2*D,'phi',(0,0,0),0,0,1)],'z',(0,0,1),ones_b=True)
k_num=gemm('num_kernel',S,H,DH,56,[('phi',(4*D,56,0),1,0,'kv',(0,56*DH,1),DH,0,1)],'num',(D,DH,1))
k_den=gemm('den_kernel',S,1,H,56,[('phi',(4*D,0,56),1,0,'z',(0,0,56),1,0,1)],'den',(H,0,1))
k_div=divk('div_kernel')
k_a=gemm('a_kernel',S,1,D,D,[('xn',(D,0,0),1,0,'hre',(0,0,1),D,0,1)],'a',(D,0,1))
k_b=gemm('b_kernel',S,1,D,D,[('xn',(D,0,0),1,0,'him',(0,0,1),D,0,1)],'b',(D,0,1))
def attn(i,src,dst):
    return [ln(f'lna{i}_kernel',src,'xn'),k_qkv,k_pq,k_pk,k_sm,k_kv,k_z,k_num,k_den,k_div,
        gemm(f'wo{i}_kernel',S,1,D,D,[('o',(D,0,0),1,0,'wo',(0,0,1),D,0,1)],dst,(D,0,1),resid=src)]
def fnet(i,src,dst):
    return [ln(f'lnb{i}_kernel',src,'xn'),k_a,k_b,
        gemm(f'y{i}_kernel',S,1,D,S,[('sre',(S,0,0),1,0,'a',(0,0,1),D,0,1),('sim',(S,0,0),1,0,'b',(0,0,1),D,0,-1)],dst,(D,0,1),resid=src)]
npre=int(sys.argv[1]); npost=int(sys.argv[2])
k_nop=nopk('nop_kernel')
seq=[k_nop]*npre+attn(0,'x','x1')+fnet(0,'x1','x2')+attn(1,'x2','x3')+fnet(1,'x3','out')+[k_nop]*npost
o=""
for n,g in seq: o+=f"; @launch kernel={n} grid=({g},1,1) block=(256,1,1) lds=0\n"
o+='.amdgcn_target "amdgcn-amd-amdhsa--gfx950"\n.text\n'
used=set(n for n,_ in seq)
for n,b,vg in kernels:
    if n in used: o+=f".globl {n}\n.p2align 8\n.type {n},@function\n{n}:\n{b}\n"
o+='.section .rodata,"a"\n'
for n,b,vg in kernels:
    if n in used:
        o+=f""".p2align 6
.amdhsa_kernel {n}
  .amdhsa_next_free_vgpr {vg}
  .amdhsa_next_free_sgpr 64
  .amdhsa_accum_offset {vg}
  .amdhsa_group_segment_fixed_size 0
  .amdhsa_kernarg_size 96
  .amdhsa_user_sgpr_count 2
  .amdhsa_user_sgpr_kernarg_segment_ptr 1
  .amdhsa_system_sgpr_workgroup_id_x 1
.end_amdhsa_kernel
"""
open(sys.argv[3],"w").write(o)
```

```python
import re, struct

def f32(x):
    return "0x%08x" % struct.unpack("<I", struct.pack("<f", x))[0]

def v(i, n=1):
    return f"v{i}" if n == 1 else f"v[{i}:{i+n-1}]"
def a(i, n=1):
    return f"a{i}" if n == 1 else f"a[{i}:{i+n-1}]"
def s(i, n=1):
    return f"s{i}" if n == 1 else f"s[{i}:{i+n-1}]"

_REG = re.compile(r'^(-|abs\(|\|)?([vas])(?:(\d+)|\[(\d+):(\d+)\])\)?\|?$')

def regs_of(op):
    op = op.strip()
    if op in ('vcc', 'vcc_lo', 'vcc_hi'): return {('s', 'vcc')}
    if op in ('exec', 'exec_lo', 'exec_hi'): return {('s', 'exec')}
    if op == 'm0': return {('s', 'm0')}
    m = _REG.match(op)
    if not m: return set()
    k = m.group(2)
    if m.group(3) is not None: return {(k, int(m.group(3)))}
    return {(k, i) for i in range(int(m.group(4)), int(m.group(5)) + 1)}

TRANS = ('v_exp_f32', 'v_log_f32', 'v_rcp_f32', 'v_rsq_f32', 'v_sqrt_f32', 'v_sin_f32', 'v_cos_f32', 'v_rcp_iflag_f32')

class Ins:
    __slots__ = ('text', 'op', 'dst', 'src', 'kind', 'passes', 'srcc', 'srcab', 'wide', 'lds')
    def __init__(self, text):
        self.text = text
        t = text.split(';')[0].strip()
        parts = t.split(None, 1)
        self.op = op = parts[0]
        rest = parts[1] if len(parts) > 1 else ''
        ops = []; depth = 0; cur = ''
        for ch in rest:
            if ch in '[(': depth += 1
            if ch in '])': depth -= 1
            if ch == ',' and depth == 0:
                ops.append(cur.strip()); cur = ''
            else: cur += ch
        if cur.strip(): ops.append(cur.strip())
        mods = []
        if ops:
            last = ops[-1].split()
            ops[-1] = last[0]; mods = last[1:]
        self.dst = set(); self.src = set(); self.passes = 0; self.srcc = set(); self.srcab = set()
        self.wide = False; self.lds = False
        R = [regs_of(o) for o in ops]
        U = lambda l: set().union(*l) if l else set()
        if op.startswith('v_mfma'):
            self.kind = 'mfma'
            self.passes = 8 if '32x32x16' in op else 4
            assert '32x32x16_bf16' in op or '16x16x32_bf16' in op, op
            self.dst = R[0]; self.srcab = R[1] | R[2]; self.srcc = R[3]; self.src = self.srcab | self.srcc
        elif op.startswith('buffer_load'):
            self.lds = 'lds' in mods
            if self.lds:
                self.kind = 'vmem_dma'; self.src = U(R) | {('s', 'm0')}
            else:
                self.kind = 'vmem_load'; self.dst = R[0]; self.src = U(R[1:])
        elif op.startswith('global_load'):
            self.kind = 'vmem_load'; self.dst = R[0]; self.src = U(R[1:])
        elif op.startswith('buffer_store') or op.startswith('buffer_atomic'):
            self.kind = 'vmem_store'; self.src = U(R)
            self.wide = op.endswith('x3') or op.endswith('x4')
            if self.wide: self.srcc = R[0]
            if op.startswith('buffer_atomic') and 'sc0' in mods:
                self.kind = 'vmem_load'; self.dst = R[0]
        elif op.startswith('buffer_'):
            self.kind = 'vmem_store'
        elif op.startswith('ds_read') or op.startswith('ds_bpermute') or op.startswith('ds_swizzle'):
            self.kind = 'ds_load'; self.dst = R[0]; self.src = U(R[1:])
        elif op.startswith('ds_'):
            self.kind = 'ds_store'; self.src = U(R)
        elif op.startswith('s_load') or op.startswith('s_memtime') or op.startswith('s_memrealtime'):
            self.kind = 'smem'; self.dst = R[0]; self.src = U(R[1:])
        elif op.startswith('v_'):
            self.kind = 'valu'
            self.dst = R[0]; self.src = U(R[1:])
            base = re.sub(r'_(e32|e64|dpp|sdwa)$', '', op)
            if base in ('v_fmac_f32', 'v_dot2c_f32_bf16', 'v_pk_fmac_f16') or '_dpp' in op:
                self.src |= R[0]
            if 'permlane' in op and 'swap' in op:
                self.dst = R[0] | R[1]; self.src = R[0] | R[1]
            if base in ('v_add_co_u32', 'v_sub_co_u32', 'v_addc_co_u32'):
                self.dst = R[0] | R[1]; self.src = U(R[2:])
            if base.startswith('v_cndmask') and len(ops) == 3: self.src |= {('s', 'vcc')}
        elif op.startswith('s_'):
            self.kind = 'salu'
            if op in ('s_waitcnt', 's_nop', 's_barrier', 's_endpgm', 's_branch', 's_sleep', 's_setprio') or op.startswith('s_cbranch') or op.startswith('s_cmp') or op.startswith('s_bitcmp'):
                self.src = U(R)
            else:
                self.dst = R[0] if R else set(); self.src = U(R[1:])
                if 'saveexec' in op: self.dst |= {('s', 'exec')}
        else:
            raise ValueError("unknown instruction: " + text)

class Prog:
    def __init__(self, name):
        self.name = name; self.items = []; self.nlab = 0
    def __call__(self, text):
        for line in text.strip().split('\n'):
            line = line.strip()
            if not line or line.startswith(';'): continue
            self.items.append(line)
    def label(self, base):
        self.nlab += 1
        return f"L_{self.name}_{base}_{self.nlab}"
    def place(self, lab, transparent=False): self.items.append(lab + (':T' if transparent else ':'))
    def interleave(self, main, side, every, first=0):
        side = list(side); n = 0
        for i, m in enumerate(main):
            if i >= first and (i - first) % every == 0 and side: self(side.pop(0))
            self(m)
        for x in side: self(x)

    def finalize(self):
        out = []
        hist = []
        vm = []
        lg = []
        smem_pending = set()
        nvm = [0]; tagpos = {}; stack = []
        def emit(ins, st=1):
            out.append('    ' + ins.text); hist.append((ins, st))
            if len(hist) > 40: hist.pop(0)
        def need_states(ins):
            need = 0; dist = 0
            for p, st in reversed(hist):
                req = hazard(p, ins)
                if req > dist: need = max(need, req - dist)
                dist += st
                if dist >= 20: break
            return need
        for line in self.items:
            if line.endswith(':T'):
                out.append(line[:-1]); continue
            if line.endswith(':'):
                pend = [x for x in vm if x] + [x for x in lg if x]
                assert not pend, f"{self.name}: register loads pending at label {line} {pend}"
                out.append(line)
                vm = [set()] * 0; lg = []; tagpos.clear()
                continue
            if line.startswith('.'):
                out.append(line); continue
            if line == 'SAVE':
                stack.append((list(vm), list(lg), set(smem_pending), nvm[0], dict(tagpos), list(hist))); continue
            if line == 'RESTORE':
                vm, lg, smem_pending, nvm[0], tp, hs = stack.pop()
                tagpos.clear(); tagpos.update(tp); hist[:] = hs; continue
            if line.startswith('WAITVM'):
                n = nvm[0] - max(tagpos[t] for t in line.split()[1:])
                assert 0 <= n <= 63, line
                line = f's_waitcnt vmcnt({n})'
            ins = Ins(line)
            if ins.op == 's_waitcnt':
                m = re.search(r'vmcnt\((\d+)\)', line)
                if m:
                    n = int(m.group(1)); vm = vm[len(vm) - n:] if n < len(vm) and n > 0 else ([] if n == 0 else vm)
                m = re.search(r'lgkmcnt\((\d+)\)', line)
                if m:
                    n = int(m.group(1)); lg = lg[len(lg) - n:] if n < len(lg) and n > 0 else ([] if n == 0 else lg)
                    if n == 0: smem_pending = set()
                emit(ins); continue
            touched = ins.src | ins.dst
            wv = None; wl = None
            chk = touched if ins.kind != 'vmem_load' else ins.src
            for i in range(len(vm) - 1, -1, -1):
                if vm[i] & chk: wv = len(vm) - 1 - i; break
            chk = touched if ins.kind != 'ds_load' else ins.src
            for i in range(len(lg) - 1, -1, -1):
                if lg[i] & chk: wl = len(lg) - 1 - i; break
            mo = re.search(r';OW=(\d+)', line)
            if mo and wl is not None: wl = max(0, wl - int(mo.group(1)))
            if smem_pending & touched: wl = 0
            if wl is not None and smem_pending: wl = 0
            if wv is not None or wl is not None:
                w = 's_waitcnt'
                if wv is not None:
                    assert wv <= 63
                    w += f' vmcnt({wv})'; vm = vm[len(vm) - wv:] if wv else []
                if wl is not None:
                    wl = min(wl, 15)
                    w += f' lgkmcnt({wl})'; lg = lg[len(lg) - wl:] if wl else []
                    if wl == 0: smem_pending = set()
                emit(Ins(w))
            n = need_states(ins)
            while n > 0:
                k = min(n, 16)
                emit(Ins(f's_nop {k-1}'), k); n -= k
            st = 1
            if ins.op == 's_nop': st = int(line.split()[1], 0) + 1
            emit(ins, st)
            if ins.kind in ('vmem_load', 'vmem_dma', 'vmem_store'):
                nvm[0] += 1
                m = re.search(r'TAG=(\w+)', line)
                if m: tagpos[m.group(1)] = nvm[0]
                vm.append(set() if ';NW' in line else set(ins.dst))
                assert len(vm) <= 63 or not any(vm[:len(vm)-63]), f"{self.name}: vmcnt overflow"
            elif ins.kind in ('ds_load', 'ds_store'): lg.append(set(ins.dst))
            elif ins.kind == 'smem': smem_pending |= ins.dst
            if ins.op.startswith('s_cbranch') or ins.op == 's_branch':
                pend = [x for x in vm if x] + [x for x in lg if x]
                assert ';T' in line or not pend, f"{self.name}: register loads pending at branch {line}"
        return '\n'.join(out) + '\n'

def vg(rs): return {r for r in rs if r[0] in 'va'}
def sg(rs): return {r for r in rs if r[0] == 's'}

def hazard(p, c):
    req = 0
    isv = lambda i: i.kind in ('vmem_load', 'vmem_dma', 'vmem_store')
    isd = lambda i: i.kind in ('ds_load', 'ds_store')
    if p.kind == 'valu':
        pv = vg(p.dst); ps = sg(p.dst)
        dl = p.op.startswith('v_dot')
        if c.kind == 'mfma' and pv & c.src: req = max(req, 3 if dl else 2)
        if c.kind == 'valu':
            base = re.sub(r'_(e32|e64)$', '', p.op)
            cb = re.sub(r'_(e32|e64)$', '', c.op)
            if base in TRANS and cb not in TRANS and pv & c.src: req = max(req, 1)
            if base in TRANS and cb in TRANS and pv & c.src: req = max(req, 1)
            if dl and pv & (c.src | c.dst):
                same_c = (cb == base and pv & c.dst and not (pv & (c.src - c.dst)))
                if not same_c: req = max(req, 3)
            if ('readlane' in c.op or 'readfirstlane' in c.op) and pv & c.src: req = max(req, 1)
            if 'permlane' in c.op and pv & c.src: req = max(req, 2)
            if '_dpp' in c.op and pv & c.src: req = max(req, 2)
            if ps & c.src: req = max(req, 4 if 'lane' in c.op else 2)
            if ('sdwa' in p.op or 'op_sel' in p.text) and not p.op.startswith('v_pk_') and pv & (c.src | c.dst): req = max(req, 1)
        elif dl and pv & c.src: req = max(req, 3)
        if isv(c) and ps & c.src: req = max(req, 5)
        if c.kind in ('salu', 'smem') and ps & c.src: req = max(req, 1)
        if ('s', 'exec') in ps: req = max(req, 5)
    if p.kind == 'mfma':
        n = p.passes
        if c.kind == 'mfma':
            if p.dst & c.srcab: req = max(req, n + 4)
            if p.dst & c.srcc and not (p.dst == c.srcc and p.passes == c.passes): req = max(req, n + 2)
            if p.dst & c.dst and not (p.dst == c.srcc): req = max(req, n + 4)
        elif c.kind == 'valu' or isv(c) or isd(c):
            if p.dst & (c.src | c.dst): req = max(req, n + 4)
            if p.srcc & c.dst: req = max(req, n - 1)
    if p.kind == 'salu':
        if ('s', 'm0') in p.dst and c.kind == 'vmem_dma': req = max(req, 1)
    if p.kind == 'vmem_store' and p.wide and p.srcc & c.dst: req = max(req, 2)
    return req

def kernel_text(name, body):
    return f".globl {name}\n.p2align 8\n.type {name},@function\n{name}:\n{body}"

def descriptor(name, vgpr, agpr=0, sgpr=96):
    acc = (vgpr + 3) // 4 * 4
    nfv = acc + agpr if agpr else vgpr
    return f""".p2align 6
.amdhsa_kernel {name}
  .amdhsa_next_free_vgpr {nfv}
  .amdhsa_next_free_sgpr {sgpr}
  .amdhsa_accum_offset {acc}
  .amdhsa_group_segment_fixed_size 0
  .amdhsa_kernarg_size 96
  .amdhsa_user_sgpr_count 2
  .amdhsa_user_sgpr_kernarg_segment_ptr 1
  .amdhsa_system_sgpr_workgroup_id_x 1
.end_amdhsa_kernel
"""
```

```python
import sys, os, re
sys.path.insert(0, os.path.dirname(__file__))
from asmlib import *

NAME = "interleave_layers__linear_kernel_hedgehog__spectral_fnet__prompt_kernel"
S, D, H = 2048, 448, 16
BLK = 28672
FSTR = 128
GSTR = 14 * 8192 + 384
EPOCH = 0
WB = 4096
WF = WB + 14 * 65536
CSG = WF + 16 * 86016
F1 = CSG + 16 * 6144
XI = F1 + 1024 * FSTR
OO = XI + 64 * BLK
S0 = OO + 64 * 32768
SB = S0 + 1024 * 256
R0L = SB + 1024 * 256
R0R = R0L + 64 * 512
LBASE = R0R + 1024 * FSTR
GG = 0
KV = GG + 16 * GSTR
KR = KV + 1024 * 1024
LSZ = KR + 64 * 1024
DBG = LBASE + 3 * LSZ
WS_USED = DBG + (5 << 20)
HUGE = 0x7fff0000
LOG2E = 1.4426950408889634
DIAG = False
DGROUP = 'main'
TMO = 24
HOP1_AT = 23
HOP1_RT = 20
HOP2_AT = 75
NWB = 16
NO0 = 8
ODELAY = 0
G_AT = 17
F1_AT = 22
PROBE = None
XR_AT = 6
NWL = 7
NWD = 6
NWA = 0
NW0 = 4
NW1 = 2
XEARLY = 1
NFC = 78
TG = 0
TK = 1
NO_WBD = 0
OTK = 0
NO_F1 = 1
WBLATE = 1
WL_POS = 11
WL_STR = 2
XR_POS = 9
INL = 1
INLC = 1
DSPLIT = 1
SL1 = 4
SL2 = 4
SL3 = 4
H2DELAY = 0
OWON = 1
FINAL2 = 1
GDELAY = 0
WD_SPLIT = -1
QT_AT = -1
WTB_AT = 2
Q_AT = 4
WBL2 = 0
OUTFL = 0
NO_GS = 0
NO_KS = 0
NO_OT = 0
NO_WT = 0
NO_XS = 0
NO_SP = 0
SENT_AT = 2
OT_AT = 2
NX2 = 8

def srd(P, r, ptr, size, off=0):
    if off:
        P(f"s_add_u32 s{r}, s{ptr}, {off}\n s_addc_u32 s{r+1}, s{ptr+1}, 0")
    elif r != ptr:
        P(f"s_mov_b32 s{r}, s{ptr}\n s_mov_b32 s{r+1}, s{ptr+1}")
    P(f"s_mov_b32 s{r+2}, {size}\n s_mov_b32 s{r+3}, 0x20000")

class Stamps:
    def __init__(self, P):
        self.P = P; self.n = 0
        if DIAG:
            P("s_memrealtime s[64:65]\n s_memtime s[66:67]")
    def init(self):
        if DIAG:
            P = self.P
            P(f"s_lshl_b32 s68, s2, 2\n s_add_u32 s68, s68, s10\n s_lshl_b32 s68, s68, 8\n s_add_u32 s68, s68, {DBG}\n s_mov_b32 s69, 0")
    def __call__(self, grp=None):
        if DIAG and (grp == 'all' or (grp or 'main') == DGROUP):
            b = 70 + 2 * self.n
            assert b + 1 < 102, "too many stamps"
            self.P(f"s_memtime s[{b}:{b+1}]"); self.n += 1
    def flush(self, t0, t1, last=False):
        if not DIAG: return
        P = self.P
        P("s_waitcnt lgkmcnt(0)")
        P(f"v_mov_b32 v{t0}, s69")
        for i in range(16):
            P(f"s_sub_u32 s{70+2*i}, s{70+2*i}, s66\n v_mov_b32 v{t1}, s{70+2*i}")
            P(f"buffer_store_dword v{t1}, v{t0}, s[4:7], s68 offen offset:{16+4*i}\n s_mov_b32 s{70+2*i}, s66")
        P("s_add_u32 s69, s69, 64")
        if last:
            P(f"s_memrealtime s[70:71]\n s_memtime s[72:73]\n s_waitcnt lgkmcnt(0)\n v_mov_b32 v{t0}, 0\n v_mov_b32 v{t1}, s64")
            P(f"buffer_store_dword v{t1}, v{t0}, s[4:7], s68 offen\n s_nop 1\n v_mov_b32 v{t1}, s70")
            P(f"buffer_store_dword v{t1}, v{t0}, s[4:7], s68 offen offset:4\n s_sub_u32 s72, s72, s66\n v_mov_b32 v{t1}, s72")
            P(f"buffer_store_dword v{t1}, v{t0}, s[4:7], s68 offen offset:8")

def softmax_blocks(A, R, T, OUT):
    mx, mn, t0, t1 = T, T + 2, T + 4, T + 5
    E = T + 6
    L = []
    for op, d in (("v_max3_f32", mx), ("v_min3_f32", mn)):
        L.append(f"{op} v{d}, v{A}, v{A+1}, v{A+2}")
    for i in range(3, 13, 2):
        for op, d in (("v_max3_f32", mx), ("v_min3_f32", mn)):
            L.append(f"{op} v{d}, v{d}, v{A+i}, v{A+i+1}")
    L += f"""v_max_f32 v{mx}, v{mx}, v{A+13}
    v_min_f32 v{mn}, v{mn}, v{A+13}
    v_mov_b32 v{t0}, v{mx}
    v_mov_b32 v{t1}, v{mn}
    v_permlane32_swap_b32 v{t0}, v{mx}
    v_permlane32_swap_b32 v{t1}, v{mn}
    v_max_f32 v{mx}, v{mx}, v{t0}
    v_min_f32 v{mn}, v{mn}, v{t1}
    v_mul_f32 v{mx}, v{mx}, v{R}
    v_mul_f32 v{mn}, v{mn}, v{R}""".split("\n")
    for i in range(7):
        L.append(f"v_pk_fma_f32 v[{E+2*i}:{E+2*i+1}], v[{A+2*i}:{A+2*i+1}], v[{R}:{R+1}], v[{mx}:{mx+1}] op_sel_hi:[1,0,0] neg_lo:[0,0,1] neg_hi:[0,0,1]")
    for i in range(7):
        L.append(f"v_pk_fma_f32 v[{E+14+2*i}:{E+15+2*i}], v[{A+2*i}:{A+2*i+1}], v[{R}:{R+1}], v[{mn}:{mn+1}] op_sel_hi:[1,0,0] neg_lo:[1,0,0] neg_hi:[1,0,0]")
    for i in range(28): L.append(f"v_exp_f32 v{E+i}, v{E+i}")
    for sgn, d in ((0, mx), (1, mn)):
        b = E + 14 * sgn
        L.append(f"v_pk_add_f32 v[{d}:{d+1}], v[{b}:{b+1}], v[{b+2}:{b+3}]")
    for i in range(2, 7):
        for sgn, d in ((0, mx), (1, mn)):
            b = E + 14 * sgn
            L.append(f"v_pk_add_f32 v[{d}:{d+1}], v[{d}:{d+1}], v[{b+2*i}:{b+2*i+1}]")
    L += f"""v_add_f32 v{mx}, v{mx}, v{mx+1}
    v_add_f32 v{mn}, v{mn}, v{mn+1}
    v_mov_b32 v{t0}, v{mx}
    v_mov_b32 v{t1}, v{mn}
    v_permlane32_swap_b32 v{t0}, v{mx}
    v_permlane32_swap_b32 v{t1}, v{mn}
    v_add_f32 v{mx}, v{mx}, v{t0}
    v_add_f32 v{mn}, v{mn}, v{t1}
    v_rcp_f32 v{mx}, v{mx}
    v_rcp_f32 v{mn}, v{mn}""".split("\n")
    for sgn, d in ((0, mx), (1, mn)):
        b = E + 14 * sgn
        for i in range(7):
            L.append(f"v_pk_mul_f32 v[{b+2*i}:{b+2*i+1}], v[{b+2*i}:{b+2*i+1}], v[{d}:{d+1}] op_sel_hi:[1,0]")
        for i in range(8):
            e = b + 7 * (i // 4) + 2 * (i % 4)
            L.append(f"v_cvt_pk_bf16_f32 v{OUT+8*sgn+i}, v{e}, {'0' if i % 4 == 3 else f'v{e+1}'}")
    return L

X = 16
AK, AV, AQ, AD = 128, 144, 160, 176
T = 192
PK = 240
R, R2 = 12, 10
A_WO = 64
A_NM, A_PHI, A_F, A_RES, A_CS = 120, 124, 132, 140, 156
NAGPR = 180
TS = 449 * 64
WK, WV, WQ, WD = 0, TS, 2 * TS, 3 * TS
STG = WD + 28672
SCR = 143616
WBL = WD
KVT = WBL + 65536
RST = KVT + 4608
PHL = SCR + 16384
GL = STG
CSL = WQ + 16384
LDS_TOTAL = PHL + 2048
XS = [SCR, WQ, 114944]
assert all(x % 128 == 0 for x in XS) and XS[2] >= STG and STG + 28672 <= SCR and RST + 512 <= LDS_TOTAL <= 163840 and STG % 64 == 0
RB = 28
TAGC = (0x7F4A7C15, 0x9E3779B9)

def flag_store(P, tagp, sr, soff, t, fl):
    P(f"""
    v_mov_b32 v{t}, s{tagp}
    v_mov_b32 v{t+1}, s{tagp+1}
    v_mov_b32 v{t+2}, 0
    s_mov_b64 exec, 1
    buffer_store_dwordx2 v[{t}:{t+1}], v{t+2}, s[{sr}:{sr+3}], {soff} offen{fl}
    s_mov_b64 exec, -1
    """)

def wd_gen(P, first, a, t):
    P(f"""
    v_bfe_u32 v{t}, v1, 3, 2
    v_and_b32 v{t+1}, 3, v1
    v_lshl_add_u32 v{t}, v{t}, 2, v{t+1}
    s_lshl_b32 s12, s8, 4
    v_add_u32 v{t}, s12, v{t}          ; p
    v_bfe_u32 v{t+1}, v1, 2, 1         ; type
    v_or_b32 v{t+2}, v{t}, v{t+1}
    v_cmp_eq_u32 vcc, 0, v{t+2}
    v_mov_b32 v{t+2}, 224
    v_cndmask_b32 v{t}, v{t}, v{t+2}, vcc
    v_cvt_f32_u32 v{t}, v{t}
    v_cvt_f32_u32 v{t+1}, v{t+1}
    v_mul_f32 v{a+1}, {f32(1/448)}, v{t}
    v_mul_f32 v{a}, 0x3e800000, v{t+1}
    v_lshrrev_b32 v{t+2}, 5, v1        ; hf
    s_mul_i32 s12, s10, 7168
    s_add_u32 s12, s12, {WD}
    v_add_u32 v{a+3}, s12, v2
    """)
    if first:
        P(f"""
        s_mul_i32 s12, s10, 112
        v_lshlrev_b32 v{t+2}, 3, v{t+2}
        v_add_u32 v{t+2}, s12, v{t+2}
        v_cvt_f32_u32 v{t+2}, v{t+2}
        v_fmac_f32 v{a}, v{a+1}, v{t+2}
        v_mul_f32 v{a+2}, {f32(16.0)}, v{a+1}
        """)
    else:
        P(f"""
        v_mul_f32 v{a+2}, {f32(8.0)}, v{a+1}
        v_lshlrev_b32 v{t+3}, 31, v{t+2}
        v_xor_b32 v{a+2}, v{a+2}, v{t+3}
        s_mul_i32 s12, s10, 7
        v_cvt_f32_u32 v{t+3}, s12
        v_fmac_f32 v{a}, v{a+2}, v{t+3}
        v_cvt_f32_u32 v{t+2}, v{t+2}
        v_mul_f32 v{t+3}, {f32(-7.0)}, v{t+2}
        v_fmac_f32 v{a}, v{a+1}, v{t+3}
        s_cmp_eq_u32 s10, 0
        s_cselect_b32 s12, 0.5, 0
        v_mul_f32 v{t+2}, s12, v{t+2}
        v_mul_f32 v{t+25}, v{t}, v{t+2}
        """)
    blocks = []
    K = t + 26
    for q in range(7):
        v = t + 8 * (q % 2); o = t + 16 + 4 * (q % 2)
        if q < 2:
            for hh in range(2):
                b = ""
                base = a if q == 0 else t + 24
                if hh == 0 and q: b += f"v_add_f32 v{base}, v{a+2}, v{a}\n v_cos_f32 v{K}, v{a+2}\n"
                for i in range(4 * hh, 4 * hh + 4):
                    if i: b += f"v_fmamk_f32 v{v+i}, v{a+1}, {f32(float(i))}, v{base}\n"
                sp = (not first) and q == 0 and hh == 1
                if sp: b += f"v_add_f32 v{t+25}, v{v+7}, v{t+25}\n v_cos_f32 v{t+25}, v{t+25}\n"
                for i in range(4 * hh, 4 * hh + 4):
                    b += f"v_cos_f32 v{v+i}, v{v+i if i else base}\n"
                if q and hh: b += f"v_add_f32 v{K}, v{K}, v{K}\n"
                b += f"v_cvt_pk_bf16_f32 v{o+2*hh}, v{v+4*hh}, v{v+4*hh+1}\n v_cvt_pk_bf16_f32 v{o+2*hh+1}, v{v+4*hh+2}, v{t+25 if sp else v+4*hh+3}\n"
                if hh: b += f"ds_write_b128 v{a+3}, v[{o}:{o+3}] offset:{1024*q}\n"
                blocks.append(b)
        else:
            p = t + 8 * ((q + 1) % 2)
            b = ""
            for i in range(4):
                b += f"v_pk_fma_f32 v[{v+2*i}:{v+2*i+1}], v[{p+2*i}:{p+2*i+1}], v[{K}:{K+1}], v[{v+2*i}:{v+2*i+1}] op_sel_hi:[1,0,1] neg_lo:[0,0,1] neg_hi:[0,0,1]\n"
            for i in range(4): b += f"v_cvt_pk_bf16_f32 v{o+i}, v{v+2*i}, v{v+2*i+1}\n"
            b += f"ds_write_b128 v{a+3}, v[{o}:{o+3}] offset:{1024*q}\n"
            blocks.append(b)
    return blocks

def red4(b):
    L = []
    for k in range(4): L.append(f"v_add_f32 v{b+k}, v{b+k}, v{b+4+k}")
    for k in range(4): L.append(f"v_add_f32 v{b+8+k}, v{b+8+k}, v{b+12+k}")
    for k in range(4): L.append(f"v_add_f32 v{b+k}, v{b+k}, v{b+8+k}")
    L += [f"v_permlane32_swap_b32 v{b}, v{b+1}", f"v_permlane32_swap_b32 v{b+2}, v{b+3}",
          f"v_add_f32 v{b}, v{b}, v{b+1}", f"v_add_f32 v{b+2}, v{b+2}, v{b+3}",
          f"v_permlane16_swap_b32 v{b}, v{b+2}", f"v_add_f32 v{b}, v{b}, v{b+2}"]
    return L

def stats_fin(b):
    return f"""v_mov_b32 v{b+1}, v{b}
    v_mov_b32 v{b+2}, {f32(1e-5)}
    v_permlane32_swap_b32 v{b}, v{b+1}
    v_mul_f32 v{b}, {f32(-1/448)}, v{b}
    v_cvt_pk_bf16_f32 v{b+3}, v{b}, v{b}
    v_accvgpr_write_b32 a{A_NM}, v{b+3}
    v_accvgpr_write_b32 a{A_NM+1}, v{b+3}
    v_accvgpr_write_b32 a{A_NM+2}, v{b+3}
    v_accvgpr_write_b32 a{A_NM+3}, v{b+3}
    v_fmac_f32 v{b+2}, {f32(1/448)}, v{b+1}
    v_fma_f32 v{b+2}, -v{b}, v{b}, v{b+2}
    v_rsq_f32 v{R}, v{b+2}
    v_mul_f32 v{R2}, {f32(LOG2E)}, v{R}""".split("\n")

def stats_fin2(sm, sq, t):
    return f"""v_mov_b32 v{t}, {f32(1e-5)}
    v_mul_f32 v{sm}, {f32(-1/448)}, v{sm}
    v_cvt_pk_bf16_f32 v{t+1}, v{sm}, v{sm}
    v_accvgpr_write_b32 a{A_NM}, v{t+1}
    v_accvgpr_write_b32 a{A_NM+1}, v{t+1}
    v_accvgpr_write_b32 a{A_NM+2}, v{t+1}
    v_accvgpr_write_b32 a{A_NM+3}, v{t+1}
    v_fmac_f32 v{t}, {f32(1/448)}, v{sq}
    v_fma_f32 v{t}, -v{sm}, v{sm}, v{t}
    v_rsq_f32 v{R}, v{t}
    v_mul_f32 v{R2}, {f32(LOG2E)}, v{R}""".split("\n")

def colsum(P, src, t, addr, so):
    for k in range(4): P(f"v_lshlrev_b32 v{t+k}, 16, v{src+k}\n v_and_b32 v{t+4+k}, 0xffff0000, v{src+k}")
    for b in (t, t + 2, t + 4, t + 6): P(f"v_permlane32_swap_b32 v{b}, v{b+1}")
    for b in (t, t + 2, t + 4, t + 6): P(f"v_add_f32 v{b}, v{b}, v{b+1}")
    P(f"""
    v_permlane16_swap_b32 v{t}, v{t+2}
    v_permlane16_swap_b32 v{t+4}, v{t+6}
    v_add_f32 v{t}, v{t}, v{t+2}
    v_add_f32 v{t+4}, v{t+4}, v{t+6}
    v_add_f32_dpp v{t}, v{t}, v{t} row_ror:8 row_mask:0xf bank_mask:0xf
    v_add_f32_dpp v{t+4}, v{t+4}, v{t+4} row_ror:8 row_mask:0xf bank_mask:0xf
    v_add_f32_dpp v{t}, v{t}, v{t} row_ror:4 row_mask:0xf bank_mask:0xf
    v_add_f32_dpp v{t+4}, v{t+4}, v{t+4} row_ror:4 row_mask:0xf bank_mask:0xf
    v_cvt_pk_bf16_f32 v{t+1}, v{t}, v{t+4}
    v_cvt_pk_bf16_f32 v{t}, v{t}, v{t+4}
    s_mov_b32 s12, 0xffff
    v_permlane32_swap_b32 v{t}, v{t+1}
    v_mov_b32 v{t+2}, v{t}
    v_mov_b32 v{t+3}, v{t+1}
    v_permlane16_swap_b32 v{t}, v{t+2}
    v_permlane16_swap_b32 v{t+1}, v{t+3}
    v_and_or_b32 v{t+3}, v{t+3}, s12, v8
    s_mov_b64 exec, 15
    buffer_store_dwordx4 v[{t}:{t+3}], v{addr}, s[4:7], {so} offen sc1
    s_mov_b64 exec, -1
    """)

def gen():
    P = Prog("m"); tail = []
    end = P.label("end"); common = P.label("common")
    def mmt(d, a_, b_, first):
        return f"v_mfma_f32_32x32x16_bf16 v[{d}:{d+15}], {a_}, {b_}, {'0' if first else f'v[{d}:{d+15}]'}"
    def mm(d, a_, b_, first, ow=0): P(mmt(d, a_, b_, first) + (f" ;OW={ow}" if ow and OWON else ""))
    def by_mode(fn):
        La = P.label("md"); Lb = P.label("md")
        P(f"s_cmp_eq_u32 s50, 0\n s_cbranch_scc0 {La} ;T")
        fn("")
        P.place(Lb, True)
        def t():
            P.place(La); fn(" sc1"); P(f"s_branch {Lb}")
        tail.append(t)
    def spin(load, cond, limit, sleep=0):
        Lx = P.label("sp"); Ly = P.label("sg")
        P("s_mov_b32 s34, 0")
        P.place(Lx)
        load(); cond()
        P(f"s_cbranch_vccz {Ly}")
        if sleep: P(f"s_sleep {sleep}")
        P(f"s_add_u32 s34, s34, 1\n s_cmp_lt_u32 s34, {limit}\n s_cbranch_scc1 {Lx}")
        P.place(Ly)
    def retry(load, cond, limit, sleep, m="vcc", after=None, inline=False):
        Ls = P.label("rs"); Lb = P.label("rb")
        cond()
        if inline and INL:
            Lo = P.label("ro") if after else Lb
            P(f"s_cbranch_vccz {Lb} ;T\n SAVE\n s_mov_b32 s34, 0")
            P.place(Ls, True)
            if sleep: P(f"s_sleep {sleep}")
            load(); cond()
            P(f"s_cbranch_vccz {Lo} ;T\n s_add_u32 s34, s34, 1\n s_cmp_lt_u32 s34, {limit}\n s_cbranch_scc1 {Ls} ;T")
            if after:
                P.place(Lo, True); after()
            P("RESTORE")
            P.place(Lb, True)
            return
        P(f"s_cbranch_vccnz {Ls} ;T" if m == "vcc" else f"s_cmp_eq_u64 {m}, 0\n s_cbranch_scc0 {Ls} ;T")
        P.place(Lb, True)
        def t():
            P.place(Ls)
            Lx = P.label("rl")
            P("s_mov_b32 s34, 0")
            P.place(Lx)
            P(f"s_sleep {sleep}")
            load(); cond()
            Lo = P.label("ro") if after else Lb
            P(f"s_cmp_eq_u64 {m}, 0\n s_cbranch_scc1 {Lo}\n s_add_u32 s34, s34, 1\n s_cmp_lt_u32 s34, {limit}\n s_cbranch_scc1 {Lx}")
            if after:
                P.place(Lo); after()
            P(f"s_branch {Lb}")
        tail.append(t)

    def take(l, n):
        for _ in range(n):
            if l: P(l.pop(0))

    kaddr = f"""v_mul_u32_u24 v7, 224, v5
    v_lshl_add_u32 v7, v4, 5, v7
    s_mul_i32 s12, s10, {32*224}@v_add_u32 v7, s12, v7
    v_add_u32 v7, {STG}, v7
    v_lshrrev_b32 v6, 2, v1
    v_mul_u32_u24 v6, 224, v6
    v_and_b32 v9, 3, v1
    v_lshl_add_u32 v6, v9, 3, v6
    v_lshl_add_u32 v9, v9, 3, v6
    s_and_b32 s12, s10, 1@s_lshl_b32 s12, s12, 5@s_add_u32 s12, s12, {STG+128}@v_add_u32 v6, s12, v6
    s_and_b32 s12, s10, 2@s_lshl_b32 s12, s12, 5@s_add_u32 s12, s12, {STG}@v_add_u32 v9, s12, v9""".split("\n")
    kaddr = [x.replace("@", "\n") for x in kaddr]
    def k_epilogue(side):
        for i in range(8): P(f"v_cvt_pk_bf16_f32 v{T+i}, v{AK+2*i}, v{AK+2*i+1}")
        mm(AK, f"a[{A_PHI}:{A_PHI+3}]", f"v[{T}:{T+3}]", True)
        mm(AK, f"a[{A_PHI+4}:{A_PHI+7}]", f"v[{T+4}:{T+7}]", False)
        for i in range(16): P(f"v_mul_f32 v{AV+i}, v{R}, v{AV+i}")
        P(f"s_mov_b32 exec_lo, 0\n v_mov_b32 v{AV+3}, 1.0\n v_mov_b32 v{AV+11}, 1.0\n s_mov_b32 exec_lo, -1")
        for i in range(8): P(f"v_cvt_pk_bf16_f32 v{T+40+i}, v{AV+2*i}, v{AV+2*i+1}")
        for i in range(2): P(f"ds_write_b128 v7, v[{T+40+4*i}:{T+43+4*i}] offset:{128+16*i}")
        sm = softmax_blocks(AK, R2, T, PK)
        sm.insert(len(sm) - 15, f"ds_write_b128 v7, v[{PK}:{PK+3}]\n ds_write_b128 v7, v[{PK+4}:{PK+7}] offset:16")
        sm.insert(len(sm) - 4, f"ds_write_b128 v7, v[{PK+8}:{PK+11}] offset:64")
        ev = max(1, (len(sm) - 30) // max(1, len(side)))
        P.interleave(sm, side, ev, 2)
        P(f"ds_write_b128 v7, v[{PK+12}:{PK+15}] offset:80")

    P(f"s_cmp_ge_u32 s2, 256\n s_cbranch_scc1 {end}")
    st = Stamps(P)
    if PROBE: P("s_memrealtime s[64:65]\n s_memtime s[66:67]")
    def probe(tag):
        if PROBE and PROBE[0] == 'stamp' and PROBE[1] == tag: P("s_memrealtime s[68:69]")
        if PROBE and PROBE[0] == 'stamp' and PROBE[1] == tag + '1':
            L = P.label("pb")
            P(f"s_cmp_eq_u32 s40, 1\n s_cbranch_scc0 {L} ;T\n s_memrealtime s[68:69]")
            P.place(L, True)
    P(f"""
    s_load_dwordx2 s[4:5], s[0:1], 88
    s_load_dwordx4 s[24:27], s[0:1], 0
    s_load_dwordx4 s[36:39], s[0:1], 16
    s_getpc_b64 s[12:13]
    L_pc:T
    s_lshr_b32 s14, s2, 3
    s_lshl_b32 s14, s14, 10
    v_lshrrev_b32 v2, 5, v0
    v_lshl_add_u32 v2, v2, 7, s14
    v_min_u32 v2, L_codeend-L_pc-4, v2
    global_load_dword v{PK+15}, v2, s[12:13] ;NW
    s_mov_b32 s40, 1
    v_lshrrev_b32 v2, 6, v0
    v_and_b32 v1, 63, v0
    v_readfirstlane_b32 s10, v2
    s_and_b32 s9, s2, 7
    s_lshl_b32 s9, s9, 1
    s_bfe_u32 s12, s2, 0x10003
    s_add_u32 s9, s9, s12
    s_lshr_b32 s8, s2, 4
    s_lshl_b32 s11, s9, 2
    s_add_u32 s11, s11, s10
    v_lshlrev_b32 v2, 4, v1
    s_sub_u32 s12, 32, s9
    s_cmp_eq_u32 s9, 0
    s_cselect_b32 s12, 16, s12
    s_cmp_lt_u32 s10, 2
    s_cselect_b32 s12, s9, s12
    s_and_b32 s45, s10, 1
    s_lshl_b32 s45, s45, 5
    s_add_u32 s45, s45, s12
    s_cmp_lt_u32 s8, 14
    s_cselect_b32 s18, 0, {HUGE}
    s_min_u32 s19, s8, 13
    v_lshrrev_b32 v6, 2, v1
    v_and_b32 v7, 3, v1
    v_mul_u32_u24 v8, 2688, v6
    v_mul_u32_u24 v9, 14, v7
    v_min_u32 v9, 40, v9
    v_add_u32 v8, v8, v9
    s_cmp_ge_u32 s9, 14
    s_cselect_b32 s35, {HUGE}, 0
    v_add_u32 v{T+24}, s35, v8
    s_min_u32 s12, s9, 13
    s_mul_i32 s12, s12, {32*2688}
    s_mul_i32 s13, s8, 56
    s_add_u32 s47, s12, s13
    s_lshr_b32 s12, s10, 1
    s_mul_i32 s13, s12, {16*2688}
    s_add_u32 s47, s47, s13
    s_and_b32 s13, s10, 1
    s_mul_i32 s16, s13, 896
    s_add_u32 s16, s16, s47
    s_add_u32 s16, s16, 896
    s_mul_i32 s14, s8, 86016
    s_add_u32 s14, s14, {WF}
    s_lshl_b32 s12, s12, 10
    s_lshl_b32 s43, s9, 11
    s_add_u32 s12, s12, s43
    s_add_u32 s12, s12, s14
    s_mul_i32 s13, s13, 28672
    s_add_u32 s44, s12, s13
    s_mul_i32 s56, s45, 896
    v_cmp_lt_u32 vcc, 55, v1
    v_mov_b32 v11, {HUGE}
    v_cndmask_b32 v11, v2, v11, vcc
    s_mul_i32 s32, s8, {2*57344}
    s_add_u32 s32, s32, s56
    s_add_u32 s33, s32, 57344
    s_lshl_b32 s55, s11, 9
    s_add_u32 s55, s55, {R0L}
    v_and_b32 v5, 31, v1
    v_lshrrev_b32 v4, 5, v1
    v_and_b32 v14, 15, v1
    v_lshlrev_b32 v13, 3, v14
    v_lshlrev_b32 v14, 7, v14
    v_lshlrev_b32 v{PK+12}, 4, v5
    s_lshl_b32 s12, s8, 4
    s_lshl_b32 s13, s10, 2
    s_add_u32 s12, s12, s13
    v_add_u32 v3, s12, v7
    v_min_u32 v3, 195, v3
    v_lshlrev_b32 v3, 7, v3
    s_mul_i32 s17, s9, {28*896}
    s_lshl_b32 s15, s10, 10
    s_lshl_b32 s3, s10, 12
    s_add_u32 s57, s56, {8*57344-1024}
    s_add_u32 s58, s56, {16*57344-2048}
    s_add_u32 s59, s56, {24*57344-3072}
    v_and_b32 v10, 7, v1
    v_lshrrev_b32 v12, 4, v1
    v_xor_b32 v10, v10, v12
    v_lshrrev_b32 v12, 3, v1
    v_mul_u32_u24 v12, 57344, v12
    v_lshl_add_u32 v{PK+2}, v10, 4, v12
    v_xor_b32 v{PK+3}, 64, v{PK+2}
    v_bfe_u32 v15, v1, 3, 2
    s_lshl_b32 s12, s10, 2
    v_add_u32 v15, s12, v15
    v_and_b32 v12, 7, v15
    v_cmp_ne_u32 vcc, 7, v12
    s_lshr_b32 s13, s10, 1
    v_subrev_u32 v15, s13, v15
    v_mad_u32_u24 v15, v4, 14, v15
    v_mul_u32_u24 v15, 896, v15
    s_and_b32 s12, s12, 4
    v_xor_b32 v12, s12, v10
    v_lshl_add_u32 v15, v12, 4, v15
    v_mov_b32 v12, {HUGE}
    v_cndmask_b32 v{PK+14}, v12, v15, vcc
    """)
    wdb = wd_gen(P, True, AV, X)
    st('s')
    P("s_waitcnt lgkmcnt(0)")
    st('s')
    probe('karg')
    P(f"s_load_dwordx2 s[48:49], s[4:5], {EPOCH}")
    srd(P, 28, 26, D * 3 * D * 2)
    P(f"buffer_load_dwordx4 v[{T+16}:{T+19}], v{T+24}, s[28:31], s16 offen")
    qload = f"s_bitcmp1_b32 s10, 0\n s_cselect_b32 s12, {HUGE}, 0\n v_max_u32 v{T+24}, s12, v{T+24}\n buffer_load_dwordx4 v[{T+20}:{T+23}], v{T+24}, s[28:31], s47 offen"
    if Q_AT < 0: P(qload)
    srd(P, 24, 24, S * D * 2)
    srd(P, 4, 4, WS_USED)
    srd(P, 60, 38, D * D * 2)
    srd(P, 36, 36, H * 28 * 28 * 2)
    xrows = f"""buffer_load_dwordx4 v[{T}:{T+3}], v{T+25}, s[24:27], s38 offen
    buffer_load_dwordx4 v[{T+4}:{T+7}], v{T+25}, s[24:27], s39 offen
    buffer_load_dword v0, v{PK+12}, s[4:7], s55 offen sc1 ;NW"""
    wl = [f"""s_and_b32 s12, s10, 1
    s_lshl_b32 s12, s12, 10
    s_add_u32 m0, s12, {PHL}
    s_mul_i32 s13, s8, 1568
    s_add_u32 s12, s12, s13
    buffer_load_dwordx4 v2, s[36:39], s12 offen lds"""]
    wl += [f"s_add_u32 m0, s15, {STG+c*4096}\n s_add_u32 s12, s17, {128*c}\n buffer_load_dwordx4 v{PK+14}, s[60:63], s12 offen lds ;TAG=wo" for c in range(7)]
    P(f"buffer_load_dword v0, v3, s[60:63], s17 offen ;NW")
    P(wl.pop(0))
    P(f"v_mov_b32 v{T+25}, v11\n s_mov_b32 s38, s32\n s_mov_b32 s39, s33")
    srd(P, 20, 4, LSZ * 2, LBASE)
    st.init()
    def x_blocks(c):
        return [(f"s_add_u32 m0, s3, {XS[c%3]-128*c}\n" if p == 0 else "") + f"buffer_load_dwordx4 v{PK+2+p%2}, s[24:27], s{56+p} offen offset:{128*c+1024*p} lds ;TAG=x{c}" for p in range(4)]
    st('s')
    setup = f"""    s_lshl_b32 s54, s11, 12
    s_add_u32 s54, s54, {S0}
    s_lshl_b32 s53, s8, 8
    s_add_u32 s53, s53, s54
    s_mov_b32 s50, 0
    s_lshl_b32 s12, s8, 2
    s_add_u32 s12, s12, s10
    s_lshl_b32 s46, s12, 10
    s_lshl_b32 s13, s9, 6
    s_add_u32 s46, s46, s13
    s_add_u32 s46, s46, {KR}
    s_lshl_b32 s12, s12, 4
    s_add_u32 s12, s12, s9
    s_lshl_b32 s41, s12, 10
    s_add_u32 s41, s41, {KV}
    #
    v_bfe_u32 v10, v1, 1, 3
    v_xor_b32 v11, v10, v4
    v_lshlrev_b32 v11, 4, v11
    v_lshl_add_u32 v11, v5, 7, v11
    v_add_u32 v11, s3, v11
    v_add_u32 v{PK+4}, {XS[1]}, v11
    v_xor_b32 v{PK+5}, 32, v{PK+4}
    v_xor_b32 v{PK+6}, 64, v{PK+4}
    v_xor_b32 v{PK+7}, 96, v{PK+4}
    v_add_u32 v{PK+8}, {XS[0]}, v11
    v_xor_b32 v{PK+9}, 32, v{PK+8}
    v_xor_b32 v{PK+10}, 64, v{PK+8}
    v_xor_b32 v{PK+11}, 96, v{PK+8}
    v_bfe_u32 v6, v1, 2, 2
    v_lshl_add_u32 v15, v4, 3, v6
    v_lshlrev_b32 v15, 6, v15
    v_bfe_u32 v6, v1, 4, 1
    v_lshl_add_u32 v15, v6, 5, v15
    v_lshl_add_u32 v15, v7, 3, v15
    #
    v_lshrrev_b32 v6, 4, v1
    v_xor_b32 v10, v10, v6
    v_lshlrev_b32 v10, 4, v10
    v_add_u32 v10, v10, v14
    s_lshr_b32 s12, s10, 1
    s_lshl_b32 s12, s12, 11
    s_add_u32 s32, s12, {STG}
    v_xor_b32 v11, 64, v10
    v_add_u32 v{AQ}, s32, v10
    v_add_u32 v{AQ+1}, s32, v11
    v_lshlrev_b32 v10, 1, v13
    v_lshl_add_u32 v{AQ+2}, v6, 9, v10
    s_and_b32 s33, s10, 1
    s_lshl_b32 s33, s33, 8
    s_add_u32 s12, s33, {WD}
    v_add_u32 v{AQ+2}, s12, v{AQ+2}
    #
    v_lshl_add_u32 v10, v6, 9, v10
    v_add_u32 v10, 1024, v10
    v_add_u32 v11, s33, v{PK+12}
    v_cmp_eq_u32 vcc, 1, v4
    v_cndmask_b32 v10, v10, v11, vcc
    s_add_u32 s12, s18, s33
    v_add_u32 v{AQ+3}, s12, v10
    v_lshrrev_b32 v6, 3, v5
    v_and_b32 v10, 3, v5
    v_lshl_add_u32 v6, v6, 2, v10
    v_and_b32 v10, 4, v5
    s_lshl_b32 s12, s19, 4
    v_lshl_add_u32 v10, v10, 1, s12
    #
    v_sub_u32 v11, 433, v10
    v_cmp_lt_u32 vcc, 7, v6
    v_cndmask_b32 v10, v10, v11, vcc
    v_add_u32 v10, v10, v6
    v_cmp_eq_u32 vcc, 448, v10
    v_mov_b32 v11, 224
    v_cndmask_b32 v10, v10, v11, vcc
    v_bfe_u32 v11, v10, 3, 3
    s_lshr_b32 s12, s33, 7
    v_lshl_add_u32 v{AQ+5}, v4, 2, s12
    v_xor_b32 v11, v11, v{AQ+5}
    #
    v_and_b32 v{AQ+5}, 7, v10
    v_lshlrev_b32 v{AQ+5}, 1, v{AQ+5}
    v_lshl_add_u32 v11, v11, 4, v{AQ+5}
    v_lshrrev_b32 v10, 6, v10
    v_lshl_add_u32 v11, v10, 12, v11
    v_lshl_add_u32 v11, v4, 10, v11
    s_lshl_b32 s12, s33, 1
    s_add_u32 s12, s12, s32
    v_add_u32 v{AQ+4}, s12, v11
    v_xor_b32 v{AQ+5}, 16, v{AQ+4}
    v_bfe_u32 v10, v5, 2, 1
    v_mad_u32_u24 v10, v10, 14, v6
    v_mul_u32_u24 v11, 112, v4
    v_add_lshl_u32 v10, v10, v11, 1
    v_add_u32 v{AQ+6}, {PHL}, v10
    #
    v_cmp_gt_u32 vcc, 14, v6
    v_cndmask_b32 v{AQ+7}, 0, -1, vcc
    v_lshlrev_b32 v10, 4, v4
    v_lshrrev_b32 v{AQ+8}, v10, v{AQ+7}
    s_add_u32 s14, s14, s15
    s_lshl_b32 s34, s19, 16
    s_lshl_b32 s12, s9, 12
    s_add_u32 s34, s34, s12
    s_add_u32 s34, s34, s32
    s_add_u32 s34, s34, {WB-STG}"""
    setup = setup.split("#")
    pre = setup + wdb[:NWD]
    if Q_AT >= 0: pre.insert(Q_AT, qload)
    for k in range(NWL): pre.insert(min(len(pre), WL_POS + WL_STR * k), wl.pop(0))
    if XEARLY: pre.insert(XR_POS, xrows)
    for b in pre: P(b)
    P(f"""
    s_getreg_b32 s12, hwreg(HW_REG_XCC_ID, 0, 4)
    s_add_u32 s48, s48, {TAGC[0]}
    s_addc_u32 s49, s49, {TAGC[1]}
    s_and_b32 s48, s48, 0xfffffff0
    s_and_b32 s12, s12, 15
    s_or_b32 s42, s48, s12
    s_mov_b32 s43, s49
    v_mov_b32 v8, s48
    v_mov_b32 v9, s49
    v_cmp_lt_u32 vcc, 1, v7
    v_cndmask_b32 v8, v8, v9, vcc
    v_and_b32 v9, 16, v2
    v_lshlrev_b32 v8, v9, v8
    v_and_b32 v8, 0xbfff0000, v8
    v_add_u32 v9, s35, v2
    v_cmp_eq_u32 vcc, 3, v7
    v_cndmask_b32 v3, 0, 16, vcc
    """)
    st('s')
    P(f"""
    v_alignbit_b32 v{T+16}, v{T+17}, v{T+16}, v3
    v_alignbit_b32 v{T+17}, v{T+18}, v{T+17}, v3
    v_alignbit_b32 v{T+18}, v{T+19}, v{T+18}, v3
    v_bfe_u32 v{T+19}, v{T+19}, v3, 16
    v_or_b32 v{T+19}, v{T+19}, v8
    buffer_store_dwordx4 v[{T+16}:{T+19}], v9, s[4:7], s44 offen sc1
    """)
    for x in wl: P(x)
    if not XEARLY: P(xrows)
    P(f"""
    s_mul_i32 s36, s8, 6144
    s_add_u32 s36, s36, {CSG}
    s_lshl_b32 s12, s9, 7
    s_lshr_b32 s13, s10, 1
    s_lshl_b32 s13, s13, 6
    s_add_u32 s12, s12, s13
    s_add_u32 s37, s12, s36
    s_and_b32 s12, s10, 1
    s_lshl_b32 s12, s12, 11
    s_add_u32 s37, s37, s12
    s_bitcmp1_b32 s10, 0
    s_cselect_b32 s12, {HUGE}, 0
    v_max_u32 v{T+13}, s12, v9
    v_max_u32 v12, s12, v2
    s_add_u32 s35, s44, 57344
    v_mov_b32 v{T+8}, 0
    v_mov_b32 v{T+9}, 0
    v_mov_b32 v{T+10}, 0
    v_mov_b32 v{T+11}, 0
    s_mov_b32 s47, s34
    s_mov_b32 s16, 0x3f803f80
    s_and_b32 s12, s9, 1
    s_lshl_b32 s13, s12, 14
    s_add_u32 s{RB}, s15, s13
    s_add_u32 s{RB+1}, s14, s13
    s_mul_i32 s13, s12, 12288
    s_sub_u32 s{RB+2}, s15, s13
    s_sub_u32 s{RB+3}, s14, s13
    s_lshl_b32 s51, s12, 14
    s_mul_i32 s52, s12, 28672
    s_sub_u32 s13, 12288, s13
    v_add_u32 v{PK+15}, s13, v15
    s_lshl_b32 s13, s12, 9
    s_add_u32 s56, s56, s13
    s_add_u32 s57, s57, s13
    s_add_u32 s58, s58, s13
    s_add_u32 s59, s59, s13
    v_add_u32 v9, s{RB}, v2
    s_add_u32 s12, s{RB+2}, 12288
    v_add_u32 v{PK+14}, s12, v2
    """)
    st('s'); st()
    work = []
    for k in range(4):
        work.append("\n".join(f"v_dot2c_f32_bf16 v{T+8+hh}, s16, v{T+4*hh+k}\n v_dot2c_f32_bf16 v{T+10+hh}, v{T+4*hh+k}, v{T+4*hh+k}" for hh in range(2)))
    work.append(f"""v_lshrrev_b32 v{PK+13}, 1, v1
    v_mov_b32 v{PK+1}, s42
    v_mov_b32 v{T+12}, s43
    v_permlane32_swap_b32 v{T+8}, v{T+9}
    v_permlane32_swap_b32 v{T+10}, v{T+11}
    v_add_f32 v{T+8}, v{T+8}, v{T+9}
    v_add_f32 v{T+10}, v{T+10}, v{T+11}
    s_mov_b32 vcc_lo, 0xffff0000
    s_mov_b32 vcc_hi, 0xffff0000
    v_permlane16_swap_b32 v{T+8}, v{T+10}
    v_add_f32 v{PK}, v{T+8}, v{T+10}
    v_cndmask_b32 v{PK+1}, v{PK+1}, v{T+12}, vcc""")
    def pub_txt(so, fl):
        return f"""s_mov_b32 exec_lo, 0x10001
        s_mov_b32 exec_hi, 0x10001
        buffer_store_dwordx2 v[{PK}:{PK+1}], v{PK+13}, s[4:7], {so} offen{fl}
        s_mov_b64 exec, -1"""
    def pub_k1(so, fl): P(pub_txt(so, fl))
    work.append("\n".join(f"v_add_f32_dpp v{PK}, v{PK}, v{PK} row_ror:{r} row_mask:0xf bank_mask:0xf" for r in (8, 4, 2, 1))
                + "\n s_lshl_b32 s12, s8, 5\n s_add_u32 s12, s12, s55\n" + pub_txt("s12", ""))
    def wdma(t, c, tag):
        r = RB if c < 3 else RB + 2
        return f"s_add_u32 m0, s{r}, {t*TS+4096*c}\n s_add_u32 s12, s{r+1}, {t*28672+4096*c}\n buffer_load_dwordx4 v2, s[4:7], s12 offen sc1 lds ;TAG={tag}"
    wq = []
    W_ = lambda c: [wdma(0, c, f"w{c}"), wdma(1, c, f"w{c}")]
    def cdma(tag): return f"s_add_u32 m0, s15, {CSL}\n s_add_u32 s12, s36, s15\n buffer_load_dwordx4 v2, s[4:7], s12 offen sc1 lds ;TAG={tag}"
    def cqdma(tag): return f"s_and_b32 s12, s15, 1024\n s_add_u32 m0, s12, {PHL}\n s_add_u32 s12, s12, s36\n s_add_u32 s12, s12, 4096\n buffer_load_dwordx4 v2, s[4:7], s12 offen sc1 lds ;TAG={tag}"
    x2 = x_blocks(2)
    x2[3] += "\n s_lshr_b32 s12, s52, 5\n" + "\n".join(f"s_sub_u32 s{56+p}, s{56+p}, s12" for p in range(4))
    wq = W_(0) + W_(1) + x_blocks(0) + W_(2) + x_blocks(1) + W_(3)
    fifo = x2 + W_(4) + [cdma("w4")] + x_blocks(3) + W_(5) + x_blocks(4) + W_(6) + x_blocks(5) + x_blocks(6)
    colsum(P, T + 16, T + 32, 2, "s37")
    P(f"""
    v_alignbit_b32 v{T+20}, v{T+21}, v{T+20}, v3
    v_alignbit_b32 v{T+21}, v{T+22}, v{T+21}, v3
    v_alignbit_b32 v{T+22}, v{T+23}, v{T+22}, v3
    v_bfe_u32 v{T+23}, v{T+23}, v3, 16
    v_or_b32 v{T+23}, v{T+23}, v8
    buffer_store_dwordx4 v[{T+20}:{T+23}], v{T+13}, s[4:7], s35 offen sc1
    """)
    P("s_add_u32 s37, s37, 4096")
    colsum(P, T + 20, T + 40, 12, "s37")
    for i in range(4): P(f"v_mov_b32 v{AK+i}, -1")
    sent = f"""v_lshrrev_b32 v10, 3, v1
    v_mul_u32_u24 v10, {GSTR}, v10
    v_and_b32 v11, 0x70, v2
    v_add3_u32 v10, v10, v11, s18
    s_lshl_b32 s12, s8, 13
    s_lshl_b32 s13, s45, 7
    s_add_u32 s12, s12, s13
    buffer_store_dwordx4 v[{AK}:{AK+3}], v10, s[20:23], s12 offen sc1
    s_add_u32 s12, s12, {8*GSTR}
    buffer_store_dwordx4 v[{AK}:{AK+3}], v10, s[20:23], s12 offen sc1
    """
    if NO_GS: sent = ""
    if SENT_AT == 0: P(sent)
    for b in wdb[NWD:]: P(b)
    for _ in range(NWA): P(wq.pop(0))
    st('s')
    P("WAITVM wo\n s_waitcnt lgkmcnt(0)\n s_barrier")
    st('s')
    for i in range(14):
        P(f"ds_read_b128 a[{A_WO+4*i}:{A_WO+4*i+3}], v{AQ+i%2} offset:{4096*(i//2)}")
        P(f"ds_read_b128 a[{4*i}:{4*i+3}], v{AQ+2} offset:{2048*i}")
        if i >= 6:
            k = i - 6
            P(f"v_mfma_f32_16x16x32_bf16 v[{T+24}:{T+27}], a[{A_WO+4*k}:{A_WO+3+4*k}], a[{4*k}:{4*k+3}], {'0' if k == 0 else f'v[{T+24}:{T+27}]'}")
    for i in range(4): P(f"ds_read_u16 v{T+14+i}, v{AQ+4+i//2} offset:{128*i}")
    for k in range(8, 14):
        P(f"v_mfma_f32_16x16x32_bf16 v[{T+24}:{T+27}], a[{A_WO+4*k}:{A_WO+3+4*k}], a[{4*k}:{4*k+3}], v[{T+24}:{T+27}]")
    for e in range(16): P(f"ds_read_u16 v{T+32+e}, v{AQ+6} offset:{(7*(e//4)+e%4)*56}")
    P(f"""
    v_lshl_or_b32 v{T+30}, v{T+15}, 16, v{T+14}
    v_lshl_or_b32 v{T+31}, v{T+17}, 16, v{T+16}
    v_cvt_pk_bf16_f32 v{T+28}, v{T+24}, v{T+25}
    v_cvt_pk_bf16_f32 v{T+29}, v{T+26}, v{T+27}
    v_permlane32_swap_b32 v{T+28}, v{T+30}
    v_permlane32_swap_b32 v{T+29}, v{T+31}
    buffer_store_dwordx4 v[{T+28}:{T+31}], v{AQ+3}, s[4:7], s47 offen sc1
    v_add_u32 v7, {CSL}, v15
    s_add_u32 s12, s15, {CSL}
    v_add_u32 v6, s12, v2
    """)
    if SENT_AT == 1: P(sent)
    for _ in range(min(NW0, len(wq))): P(wq.pop(0))
    for e in range(8):
        P(f"v_lshl_or_b32 v{T+32+2*e}, v{T+33+2*e}, 16, v{T+32+2*e}")
        P(f"v_and_b32 v{T+32+2*e}, v{AQ+7+e%2}, v{T+32+2*e}\n v_accvgpr_write_b32 a{A_PHI+e}, v{T+32+2*e}")
    SN = T + 44
    st('s')
    for _ in range(min(NW1, len(wq))): P(wq.pop(0))
    for b in work: P(b)
    misc = [
    f"""s_lshl_b32 s12, s11, 15
    s_lshl_b32 s13, s8, 11""",
    f"""s_add_u32 s12, s12, s13
    s_add_u32 s12, s12, {OO}
    v_mov_b32 v11, s12
    s_add_u32 s12, s53, {SB-S0-16*128}
    v_mov_b32 v3, s12""",
    f"""v_cmp_lt_u32 vcc, 15, v1
    v_min_u32 v10, 17, v1
    v_mov_b32 v13, v8
    v_cndmask_b32 v11, v11, v3, vcc
    v_mov_b32 v14, 1024
    v_lshl_add_u32 v11, v10, 7, v11""",
    f"""s_lshl_b32 s17, s19, 16
    s_and_b32 s12, s11, 7
    s_lshl_b32 s12, s12, 13
    s_add_u32 s17, s17, s12
    s_add_u32 s17, s17, {WB}""",
    f"""v_lshlrev_b32 v{AQ}, 7, v5
    v_accvgpr_write_b32 a{A_WO}, v11"""]
    late = [wdma(2, c, "q") for c in range(7)] + [cqdma("q")]
    otouch = f"buffer_load_dword v0, v11, s[4:7], 0 offen sc1 ;NW"
    if NO_OT: otouch = ""
    for m in misc: P(m)
    st('s')
    for b in wq: P(b)
    P(f"s_mov_b32 s47, s17\n v_add_u32 v12, s51, v15")
    st('s'); st()
    def validate(dmas, offs, tag, t):
        def rd():
            for k, (ad, o) in enumerate(offs): P(f"ds_read_b32 v{t+k}, v{ad} offset:{o+12}")
        def cond():
            n = len(offs)
            P(f"v_xor_b32 v{t+n-1}, v8, v{t+n-1}")
            for k in range(n - 2, -1, -1): P(f"v_bitop3_b32 v{t+k}, v8, v{t+k}, v{t+k+1} bitop3:0xbe")
            P(f"v_cmp_lt_u32 vcc, 0xffff, v{t}")
        def reload():
            P("s_mov_b32 s33, m0")
            for d in dmas: P(d)
            P("s_waitcnt vmcnt(0)\n s_mov_b32 m0, s33"); rd()
        return (lambda: (P(f"WAITVM {tag}") if tag else None, rd())), (lambda: retry(reload, cond, 0x40000, 4))
    VT = T + 32
    def xread(c):
        sl = c % 3
        return [f"ds_read_b128 v[{X+16*c+4*i}:{X+16*c+4*i+3}], v{PK+(8 if sl == 0 else 4)+i} offset:{XS[2]-XS[1] if sl == 2 else 0}" for i in range(4)]
    def vch(c):
        of = [(9, 4096 * c), (9, WV + 4096 * c)] if c < 3 else [(PK + 14, 4096 * (c - 3)), (PK + 14, WV + 4096 * (c - 3))]
        dm = [wdma(0, c, "z"), wdma(1, c, "z")]
        if c == 4: dm.append(cdma("z")); of.append((6, 0))
        return validate(dm, of, f"w{c} x{c}", VT)
    def rdw(q, t):
        for rd in range(2):
            r = 8 * (q % 4) + 4 * t + 2 * rd
            P(f"ds_read_b64_tr_b16 a[{r}:{r+1}], v{12 if q < 12 else PK+15} offset:{t*WV+(q if q < 12 else q-12)*1024+256*rd}")
    v1_, v2_ = vch(0)
    v1_()
    for b in xread(0): P(b)
    v2_()
    P("s_barrier")
    st('s')
    probe('loop')
    for q in range(2): rdw(q, 0); rdw(q, 1)
    take(fifo, 3)
    sf = stats_fin2(T, T + 2, T + 4)
    def s0check():
        Ls = P.label("s0"); Lb = P.label("s0r")
        def chk(t, lo): P(f"v_cmp_ne_u32 vcc, s{lo}, v{t+1}\n v_cmp_ne_u32 s[32:33], s43, v{t+3}\n s_or_b64 vcc, vcc, s[32:33]")
        chk(T, 42)
        P(f"s_cbranch_scc1 {Ls} ;T")
        P.place(Lb, True)
        def s0slow(Ls=Ls, Lb=Lb, t=T):
            La = P.label("s0a"); Lq = P.label("s0b"); Lc = P.label("s0c")
            P.place(Ls)
            P("s_mov_b32 s34, 0")
            P.place(La)
            P(f"buffer_load_dwordx4 v[{t}:{t+3}], v{PK+12}, s[4:7], s55 offen sc1")
            chk(t, 42)
            P(f"""
            s_cbranch_scc0 {Lb}
            s_add_u32 s34, s34, 1
            s_cmp_lt_u32 s34, {TMO}
            s_cbranch_scc1 {La}
            s_lshl_b32 s13, s11, 11
            s_add_u32 s13, s13, {R0R}
            s_lshl_b32 s12, s8, 7
            s_add_u32 s12, s12, s13
            v_lshrrev_b32 v{t+8}, 1, v5
            v_and_b32 v{t+9}, 16, v{PK+12}
            v_lshl_add_u32 v{t+8}, v{t+8}, 7, v{t+9}
            """)
            pub_k1("s12", " sc1")
            P("s_mov_b32 s34, 0")
            P.place(Lq)
            P(f"buffer_load_dwordx4 v[{t}:{t+3}], v{PK+12}, s[4:7], s55 offen sc1")
            chk(t, 42)
            P(f"""
            s_cbranch_scc0 {Lb}
            buffer_load_dwordx4 v[{t}:{t+3}], v{t+8}, s[4:7], s13 offen sc1
            v_mov_b32 v{t+9}, v{t+1}
            v_and_b32 v{t+1}, 0xfffffff0, v{t+1}
            """)
            chk(t, 48)
            P(f"""
            s_cbranch_scc0 {Lc}
            s_sleep 8
            s_add_u32 s34, s34, 1
            s_cmp_lt_u32 s34, 0x80000
            s_cbranch_scc1 {Lq}
            """)
            P.place(Lc)
            P(f"v_cmp_ne_u32 vcc, s42, v{t+9}\n s_cmp_lg_u64 vcc, 0\n s_cselect_b32 s50, 1, 0\n s_branch {Lb}")
        tail.append(s0slow)
    fill = sf + kaddr
    def vm(q):
        if fifo:
            m = re.search(r"TAG=x(\d)", fifo[0])
            if m and int(m.group(1)) >= 3 and q < 4 * (int(m.group(1)) - 3): return False
            P(fifo.pop(0)); return True
        return False
    fifo.append(f"buffer_load_dwordx4 v[{T}:{T+3}], v{PK+12}, s[4:7], s55 offen sc1")
    if SENT_AT == 2:
        sent2 = sent.replace(f"v[{AK}:{AK+3}]", f"v[{AD}:{AD+3}]").replace("v10", f"v{AQ+8}").replace("v11", f"v{AQ+9}")
        for i in range(4): P(f"v_mov_b32 v{AD+i}, -1")
    for q in range(28):
        c, i = divmod(q, 4)
        if i == 0: st('p1')
        xr = f"v[{X+4*q}:{X+4*q+3}]"; b = 8 * (q % 4)
        mm(AK, f"a[{b}:{b+3}]", xr, q == 0)
        if i == 2 and c < 6: v2_(); P("s_barrier")
        if q + 2 < 28: rdw(q + 2, 0)
        if i == 1 and c < 6:
            for l in xread(c + 1)[:2]: P(l)
        elif i != 2 and vm(q): pass
        elif q == 23: s0check()
        elif q > 23: take(fill, 4)
        if q == 27:
            for k in range(2): mm(AK, f"a[{A_CS+4*k}:{A_CS+3+4*k}]", f"a[{A_NM}:{A_NM+3}]", False); take(fill, 5)
        mm(AV, f"a[{b+4}:{b+7}]", xr, q == 0)
        if q + 2 < 28: rdw(q + 2, 1)
        if i == 0 and c < 6:
            vm(q)
            assert not any(f"TAG=x{c+1}" in z or f"TAG=w{c+1}" in z for z in fifo), (q, fifo[:3])
            v1_, v2_ = vch(c + 1); v1_()
        elif i == 1 and c < 6:
            for l in xread(c + 1)[2:]: P(l)
            vm(q)
        elif q >= 23: take(fill, 3)
        else: vm(q); vm(q)
        if q in (14, 15):
            for k in (2 * (q - 14), 2 * (q - 14) + 1):
                for rd in range(2): P(f"ds_read_b64_tr_b16 a[{A_CS+4*k+2*rd}:{A_CS+4*k+2*rd+1}], v7 offset:{1024*k+256*rd}")
        if q >= 18 and late and not fifo: P(late.pop(0))
    assert not fifo
    P("s_mul_i32 s56, s45, 896")
    for k in range(2): mm(AV, f"a[{A_CS+8+4*k}:{A_CS+11+4*k}]", f"a[{A_NM}:{A_NM+3}]", False)
    assert not fill
    st()
    probe('front1')
    assert not late
    wta = f"buffer_load_dword v0, v{AQ}, s[4:7], s47 offen sc1 ;NW"
    wtb = f"s_add_u32 s47, s47, 4096\n buffer_load_dword v0, v{AQ}, s[4:7], s47 offen sc1 ;NW"
    if NO_WT: wta = wtb = ""
    side = [wta, sent2 if SENT_AT == 2 else "", "", wtb if WTB_AT == 0 else "", "", ""]
    if WTB_AT == 2: side = [sent2 if SENT_AT == 2 else "", wta + "\n" + wtb, "", "", "", "", "", ""]
    if OTK == 1: side[0] = otouch + "\n" + side[0]
    if OTK == 2: side[2] = otouch
    NAFTER = 2 * (SENT_AT == 2 and not NO_GS) + 2 - 2 * NO_WT - 3 * NO_XS - NO_F1 + (OTK > 0)
    k_epilogue(side)
    P("s_waitcnt lgkmcnt(0)")
    P.place(common)
    P("s_barrier")
    st.n = max(st.n, 4 if DGROUP == 'main' else 0)
    st()
    def kvm(k):
        for t in range(2):
            P(f"v_mfma_f32_16x16x32_bf16 v[{T+4*t}:{T+4*t+3}], a[{16+16*t+4*k}:{19+16*t+4*k}], a[{4*k}:{4*k+3}], {'0' if k == 0 else f'v[{T+4*t}:{T+4*t+3}]'}")
    for k in range(4):
        for rd in range(2):
            P(f"ds_read_b64_tr_b16 a[{4*k+2*rd}:{4*k+2*rd+1}], v6 offset:{(32*k+16*rd)*224}")
        for t in range(2):
            for rd in range(2):
                P(f"ds_read_b64_tr_b16 a[{16+16*t+4*k+2*rd}:{17+16*t+4*k+2*rd}], v9 offset:{(32*k+16*rd)*224+8*t}")
        if k >= 2: kvm(k - 2)
    kvm(2); kvm(3)
    P(f"""
    s_add_u32 s12, s51, {WQ}
    v_add_u32 v3, s12, v15
    s_add_u32 s12, s51, {WD}
    v_add_u32 v11, s12, v2
    s_cmp_lt_u32 s8, 14
    s_cselect_b32 s12, -1, 0
    v_mov_b32 v{T+12}, s12
    v_lshlrev_b32 v{T+13}, 2, v1
    s_add_u32 s55, s53, {SB-S0}
    """)
    for i in range(4): P(f"v_cvt_pk_bf16_f32 v{T+8+i}, v{T+2*i}, {'0' if i == 3 else f'v{T+2*i+1}'}")
    P(f"v_or_b32 v{T+11}, v{T+11}, v13")
    P(f"buffer_store_dwordx4 v[{T+8}:{T+11}], v2, s[20:23], s41 offen sc1")
    by_mode(lambda fl: P(f"buffer_store_dword v{T+12}, v{T+13}, s[4:7], s55 offen{fl}"))
    st()
    st('e')
    probe('pub')
    H1 = AK
    def rd2(i):
        b = (i % 8) * 4
        if i < 28:
            P(f"ds_read_b128 a[{b}:{b+3}], v11 offset:{i*1024}")
            if i == 11: P("v_subrev_u32 v11, s52, v11")
            if i == 27: P(f"v_add_u32 v11, {WD}, v2")
        else:
            for rd in range(2): P(f"ds_read_b64_tr_b16 a[{b+2*rd}:{b+2*rd+1}], v3 offset:{256*rd}")
            if i < 55: P("v_add_u32 v3, v3, v14")
            if i == 39: P("v_subrev_u32 v3, s52, v3")
    sw = f"""v_and_b32 v8, 15, v1
    v_lshrrev_b32 v7, 4, v1
    v_mul_u32_u24 v9, 144, v8
    v_lshlrev_b32 v8, 2, v8
    v_lshl_add_u32 v6, v7, 12, v8
    s_mul_i32 s16, s9, {1024-64}
    s_sub_u32 s16, s41, s16
    v_lshl_add_u32 v9, v7, 4, v9
    s_and_b32 s13, s10, 1
    s_mul_i32 s13, s13, {16*144-32}
    s_lshl_b32 s12, s10, 5
    s_add_u32 s13, s13, s12
    s_add_u32 s13, s13, {KVT}
    v_add_u32 v9, s13, v9
    v_mov_b32_dpp v{H1+8}, v13 quad_perm:[0,0,0,0] row_mask:0xf bank_mask:0x1
    v_mov_b32 v{H1+9}, 0
    v_mov_b32 v{H1+10}, 0xffff0000
    v_mov_b32_dpp v{H1+8}, v13 quad_perm:[1,1,1,1] row_mask:0xf bank_mask:0x2
    s_mov_b32 vcc_lo, 0x88888888
    s_mov_b32 vcc_hi, 0x88888888
    v_mov_b32_dpp v{H1+8}, v13 quad_perm:[2,2,2,2] row_mask:0xf bank_mask:0x4
    v_cndmask_b32 v{H1+9}, v{H1+9}, v{H1+10}, vcc
    s_nop 0
    v_mov_b32_dpp v{H1+8}, v13 quad_perm:[3,3,3,3] row_mask:0xf bank_mask:0x8
    s_lshl_b32 s14, s19, 16
    s_lshl_b32 s15, s10, 11
    s_add_u32 s14, s14, s15
    s_add_u32 s14, s14, {WB}
    s_lshl_b32 s13, s9, 6
    s_sub_u32 s35, s46, s13""".split("\n")
    def hop1_load(x=""):
        for i in range(4): P(f"buffer_load_dword v{H1+i}, v6, s[20:23], s16 offen offset:{1024*i} sc1{x}")
    h1a = [f"v_lshlrev_b32 v{H1+4}, 16, v{H1}", f"v_and_b32 v{H1+5}, 0xffff0000, v{H1}"]
    for i in range(1, 4):
        h1a += [f"v_lshlrev_b32 v{H1+6}, 16, v{H1+i}", f"v_and_b32 v{H1+7}, 0xffff0000, v{H1+i}",
                f"v_add_f32 v{H1+4}, v{H1+4}, v{H1+6}", f"v_add_f32 v{H1+5}, v{H1+5}, v{H1+7}"]
    h1chk = f"v_xor_b32 v{H1+4}, v{H1+8}, v{H1}\n" + "".join(f"v_bitop3_b32 v{H1+4}, v{H1+8}, v{H1+i}, v{H1+4} bitop3:0xbe\n" for i in range(1, 4)) + f"v_and_b32 v{H1+4}, v{H1+4}, v{H1+9}\n v_cmp_ne_u32 vcc, 0, v{H1+4}"
    h1b = [f"v_permlane32_swap_b32 v{H1+4}, v{H1+5}\n v_add_f32 v{H1+4}, v{H1+4}, v{H1+5}\n v_mov_b32 v{H1+5}, v{H1+4}",
           f"v_permlane16_swap_b32 v{H1+4}, v{H1+5}\n v_add_f32 v{H1+4}, v{H1+4}, v{H1+5}\n v_mov_b32 v{H1+5}, v{H1+4}",
           f"v_permlane32_swap_b32 v{H1+4}, v{H1+5}\n v_cvt_pk_bf16_f32 v{H1+4}, v{H1+4}, v{H1+5}\n v_bfi_b32 v{H1+4}, v{H1+9}, v{H1+8}, v{H1+4}\n s_mov_b64 exec, 0xffff\n buffer_store_dword v{H1+4}, v8, s[20:23], s46 offen sc1\n s_mov_b64 exec, -1"]
    wb = []
    for c in range(8):
        wb.append(f"s_add_u32 m0, s15, {WBL+c*8192}\n s_add_u32 s12, s14, {c*8192}\n buffer_load_dwordx4 v2, s[4:7], s12 offen sc1 lds")
        wb.append(f"buffer_load_dwordx4 v2, s[4:7], s12 offen offset:1024 sc1 lds")
    h1done = False
    if NO_WBD: wb = []
    def h1step():
        if h1a: take(h1a, 3)
        elif h1b: P(h1b.pop(0))
    swa = sw
    def dstep(i):
        mm(AD, f"v[{X+4*i}:{X+4*i+3}]", f"a[{(i%8)*4}:{(i%8)*4+3}]", i == 0, 1 if i % 2 == 0 and i else 0)
        if i + 6 < 28: rd2(i + 6)
    NJ = 22
    Ll2 = P.label("d2"); Lj = P.label("dj")
    for i in range(6): rd2(i)
    P(f"s_cmp_eq_u32 s40, 0\n s_cbranch_scc1 {Ll2} ;T\n SAVE")
    rot = lambda: "s_sub_u32 s32, s13, s35\n s_cselect_b32 s33, 112, 0\n s_add_u32 s32, s32, s33"
    idx = lambda d, n: "s_set_gpr_idx_on s32, 1\n" + "".join(f"v_mov_b32 v{d+k}, v{X+k}\n" for k in range(n)) + "s_set_gpr_idx_off"
    ex = [f"v_mov_b32 v{T+28}, -1\n v_mov_b32 v{T+29}, -1\n v_mov_b32 v{T+30}, -1\n v_mov_b32 v{T+31}, -1\n v_add_u32 v6, s18, v2",
          f"s_mul_i32 s12, s11, {BLK}\n s_lshl_b32 s13, s19, 11\n s_add_u32 s12, s12, s13\n s_add_u32 s12, s12, {XI}",
          "XSENT",
          ("" if NO_F1 else f"buffer_load_dwordx2 v[{AV+4}:{AV+5}], v{AQ+3}, s[4:7], s17 offen sc1\n") + (wtb if WTB_AT == 1 else ""),
          f"s_and_b32 s12, s15, 1024\n s_add_u32 s12, s12, {PHL}\n v_add_u32 v{AV}, s12, v2\n s_add_u32 s12, s15, {WQ}\n v_add_u32 v9, s12, v2",
          "s_lshr_b32 s35, s51, 8\n s_lshl_b32 s13, s19, 2\n" + rot(),
          idx(T + 16, 4),
          "s_sub_u32 s13, 108, s13\n" + rot(),
          idx(T + 20, 4),
          "s_add_u32 s13, s13, 4\n s_cmp_eq_u32 s19, 0\n s_cselect_b32 s13, 56, s13\n" + rot(),
          f"v_mov_b32 v{T+24}, v{T+20}\n s_mov_b32 exec_hi, 0\n" + idx(T + 24, 1) + "\n s_mov_b32 exec_hi, -1",
          "Q1",
          f"v_permlane32_swap_b32 v{T+20}, v{T+21}\n v_permlane32_swap_b32 v{T+22}, v{T+23}\n v_min_u32 v6, 11, v1\n v_permlane32_swap_b32 v{T+21}, v{T+20}\n v_permlane32_swap_b32 v{T+23}, v{T+22}",
          f"v_lshrrev_b32 v7, 2, v6\n v_mul_u32_u24 v7, {TS-64}, v7\n v_lshl_add_u32 v{AV+7}, v6, 4, v7\n v_add_u32 v{AV+1}, {PHL}, v15",
          "Q2"]
    def xsent(fl):
        P(f"""
        buffer_store_dwordx4 v[{T+28}:{T+31}], v6, s[4:7], s12 offen{fl}
        buffer_store_dwordx4 v[{T+28}:{T+31}], v6, s[4:7], s12 offen offset:1024{fl}
        buffer_store_dword v{T+28}, v{T+13}, s[4:7], s53 offen{fl}
        """)
    q1, q2 = validate([wdma(2, c, "z") for c in range(7)] + [cqdma("z")], [(9, 4096 * c) for c in range(7)] + [(AV, 0)], None, AQ + 8)
    un = []
    for e in range(8):
        un += [f"v_and_b32 v{T+25}, 0xffff0000, v{T+16+e//2}" if e % 2 else f"v_lshlrev_b32 v{T+25}, 16, v{T+16+e//2}", f"v_accvgpr_write_b32 a{A_RES+e}, v{T+25}"]
    cm = [T + 21, T + 20, T + 23, T + 22, T + 24]
    for e in range(1, 9):
        un += [f"v_and_b32 v{T+25}, 0xffff0000, v{cm[e//2]}" if e % 2 else f"v_lshlrev_b32 v{T+25}, 16, v{cm[e//2]}", f"v_accvgpr_write_b32 a{A_RES+7+e}, v{T+25}"]
    sw = list(swa)
    for i in range(NJ):
        dstep(i)
        if ex:
            e = ex.pop(0)
            if e == "XSENT":
                if not NO_XS: by_mode(xsent)
            elif e == "Q1": P(f"s_waitcnt vmcnt({NAFTER+6})"); q1()
            elif e == "Q2": q2()
            else: P(e)
        else: take(sw, 5)
    assert not ex and not sw
    st('e')
    if not NO_F1: retry(lambda: P(f"buffer_load_dwordx2 v[{AV+4}:{AV+5}], v{AQ+3}, s[4:7], s17 offen sc1"),
          lambda: P(f"v_cmp_ne_u64 vcc, s[48:49], v[{AV+4}:{AV+5}]"), 0x80000, 8)
    P(f"s_barrier\n ds_read_b128 v[{AV+8}:{AV+11}], v{AV+7} offset:{224*64}")
    for k in range(4): P(f"ds_read_b64_tr_b16 a[{A_CS+16+2*k}:{A_CS+17+2*k}], v{AV+1} offset:{1024*(k//2)+256*(k%2)}")
    for i in range(NJ, 28):
        mm(AD, f"v[{X+4*i}:{X+4*i+3}]", f"a[{(i%8)*4}:{(i%8)*4+3}]", False)
        rd2(i + 6)
        if i == HOP1_AT: hop1_load(" ;NW"); P(f"v_accvgpr_read_b32 v7, a{A_WO}\n buffer_load_dword v0, v7, s[4:7], 0 offen sc1 ;NW")
        take(un, 6)
    assert not un
    P(f"ds_write_b128 v{AV+7}, v[{AV+8}:{AV+11}] offset:{448*64}")
    P(f"s_branch {Lj} ;T")
    P("RESTORE")
    P.place(Ll2, True)
    sw = list(swa)
    for i in range(28):
        mm(AD, f"v[{X+4*i}:{X+4*i+3}]", f"a[{(i%8)*4}:{(i%8)*4+3}]", i == 0, 1 if i % 2 == 0 and 0 < i < NJ else 0)
        rd2(i + 6); take(sw, 4)
        if i == HOP1_AT: hop1_load(); P(f"v_mov_b32 v7, {HUGE}\n buffer_load_dword v0, v7, s[4:7], 0 offen sc1 ;NW")
    P.place(Lj, True)
    st(); st('e')
    assert NJ <= HOP1_AT < 28
    for i in range(28, 56):
        q = i % 28
        xr = f"v[{X+4*q}:{X+4*q+3}]"
        w = f"a[{(i%8)*4}:{(i%8)*4+3}]"
        if i < 28: mm(AD, xr, w, False)
        else: mm(AQ, w, xr, i == 28, 2 if i % 2 == 0 else 0)
        if i == 28: P("s_barrier")
        if i + 6 < 56: rd2(i + 6)
        if i in (29, 30): mm(AQ, f"a[{A_CS+16+4*(i-29)}:{A_CS+19+4*(i-29)}]", f"a[{A_NM}:{A_NM+3}]", False)
        if i == HOP1_AT + HOP1_RT:
            st('e')
            retry(hop1_load, lambda: P(h1chk), 0x40000, SL1, inline=True); h1done = True
            st('e')
        elif h1done and (h1a or h1b): h1step()
        elif i > HOP1_AT and i % 2 == 0 and wb and (h1done or not WBLATE): P(wb.pop(0))
    assert not sw
    st(); st('e')
    for i in range(8): P(f"v_cvt_pk_bf16_f32 v{T+i}, v{AQ+2*i}, v{AQ+2*i+1}")
    mm(AQ, f"a[{A_PHI}:{A_PHI+3}]", f"v[{T}:{T+3}]", True)
    mm(AQ, f"a[{A_PHI+4}:{A_PHI+7}]", f"v[{T+4}:{T+7}]", False)
    if not h1done: retry(hop1_load, lambda: P(h1chk), 0x40000, SL1, inline=True)
    while h1a or h1b: h1step()
    P(f"""
    v_and_b32 v7, 3, v5
    v_and_b32 v8, 8, v5
    v_lshl_add_u32 v7, v8, 1, v7
    v_and_b32 v8, 4, v5
    v_lshl_add_u32 v7, v8, 1, v7
    v_bfe_u32 v8, v5, 4, 1
    v_lshl_add_u32 v7, v8, 2, v7
    v_mul_u32_u24 v7, 144, v7
    v_lshl_add_u32 v7, v4, 5, v7
    v_add_u32 v7, {KVT}, v7
    """)
    st()
    def hop2_load(): P(f"buffer_load_dwordx4 v[{H1}:{H1+3}], v2, s[20:23], s35 offen sc1")
    sm = softmax_blocks(AQ, R2, T, PK)
    for i, l in enumerate(sm):
        if i == HOP2_AT: hop2_load()
        elif i % 8 == 4 and wb: P(wb.pop(0))
        P(l)
    if HOP2_AT == len(sm): hop2_load()
    for b in wb: P(b)
    A1 = AQ
    for i in range(16): P(f"v_accvgpr_read_b32 v{A1+i}, a{A_RES+i}")
    P(f"""
    s_lshl_b32 s13, s11, 15
    s_add_u32 s13, s13, {OO}
    s_lshl_b32 s16, s8, 11
    s_add_u32 s16, s16, s13
    s_mov_b32 s17, 0xffff
    """)
    if HOP2_AT > len(sm):
        if H2DELAY: P(f"s_sleep {H2DELAY}")
        hop2_load()
    st(); st('e')
    if DIAG and DGROUP == 'e': P(f"v_mov_b32 v{H1+4}, v{H1+3}"); st('e')
    retry(hop2_load, lambda: P(f"v_xor_b32 v{H1+4}, v13, v{H1+3}\n v_cmp_lt_u32 vcc, s17, v{H1+4}"), 0x40000, SL2, inline=True)
    P(f"""
    """)
    st('e')
    P(f"""
    ds_write_b128 v9, v[{H1}:{H1+3}]
    s_waitcnt vmcnt(0) lgkmcnt(0)
    s_barrier
    """)
    st()
    for i in range(4): P(f"ds_read_b128 a[{4*i}:{4*i+3}], v7 offset:{(i//2)*64+(i%2)*16}")
    for i in range(4): mm(AV, f"a[{4*i}:{4*i+3}]", f"v[{PK+4*i}:{PK+4*i+3}]", i == 0)
    DEF = 20
    def rdb(q, t, slot):
        P(f"ds_read_b128 a[{32+4*slot}:{35+4*slot}], v11 offset:{q*2048+t*1024}")
    seq = []
    for q in range(32):
        seq.append((q, 0))
        if q < DEF: seq.append((q, 1))
    nfirst = len(seq)
    seq += [(q, 1) for q in range(DEF, 32)]
    PF = 6
    for i in range(PF): rdb(seq[i][0], seq[i][1], i % 8)
    P(f"v_add_f32 v{R}, {f32(1e-6)}, v{AV+7}\n v_rcp_f32 v{R}, v{R}")
    def pub_o(fl):
        for u in range(2):
            for i in range(4 * u, 4 * u + 4):
                P(f"v_pk_mul_f32 v[{AV+2*i}:{AV+2*i+1}], v[{AV+2*i}:{AV+2*i+1}], v[{R}:{R+1}] op_sel_hi:[1,0]")
            for i in range(4 * u, 4 * u + 4): P(f"v_cvt_pk_bf16_f32 v{T+i}, v{AV+2*i}, v{AV+2*i+1}")
            P(f"v_and_or_b32 v{T+4*u+3}, v{T+4*u+3}, s17, v13")
            P(f"buffer_store_dwordx4 v[{T+4*u}:{T+4*u+3}], v2, s[4:7], s16 offen offset:{1024*u}{fl}")
    by_mode(pub_o)
    Lspare = P.label("spare")
    st('all')
    probe('o')
    P(f"s_cmp_ge_u32 s8, 14\n s_cbranch_scc1 {Lspare} ;T")
    P(f"""
    v_and_b32 v7, 15, v1
    v_lshlrev_b32 v7, 4, v7
    v_lshl_add_u32 v7, v4, 2, v7
    v_bfe_u32 v6, v1, 4, 1
    v_lshl_add_u32 v7, v6, 3, v7
    s_lshl_b32 s12, s10, 7
    s_add_u32 s12, s12, {RST}
    v_lshl_add_u32 v{PK+8}, v5, 2, s12
    v_lshl_add_u32 v{PK+9}, v4, 4, s12
    v_lshrrev_b32 v6, 1, v5
    v_mul_u32_u24 v6, {GSTR}, v6
    s_bfe_u32 s12, s45, 0x10001
    v_xor_b32 v8, s12, v4
    v_lshl_add_u32 v6, v8, 5, v6
    v_and_b32 v8, 16, v2
    v_add_u32 v6, v6, v8
    s_add_u32 s16, s54, {SB-S0}
    s_lshl_b32 s12, s8, 13
    s_lshl_b32 s44, s45, 7
    s_add_u32 s44, s44, s12
    """)
    def stream(n, chk, lead):
        def ld(q, sr="s35"):
            return (f"s_add_u32 {sr}, s13, {4096*(q//4)}\n" if q % 4 == 0 else "") + f"buffer_load_dwordx4 v[{X+4*q}:{X+4*q+3}], v2, s[4:7], {sr} offen offset:{1024*(q%4)} sc1"
        def check(c, hist):
            frs = [q for q, _ in hist if q is not None]
            assert max(frs) >= 4 * c + 3
            k = [q for q, _ in hist].index(4 * c + 3)
            later = [(q, t) for q, t in hist[k + 1:]]
            def reload():
                for q in range(4 * c, 4 * c + 4): P(ld(q, "s12"))
            def after():
                for q, t in later: P((ld(q, "s12") if q is not None else t) + " ;NW")
            retry(reload, lambda: chk(c), 0x40000, 0 if c < INLC else 1, after=after, inline=c < INLC)
        return ld, check
    def ochk(c):
        b = X + 16 * c + 3
        P(f"v_xor_b32 v8, v13, v{b}")
        for k in range(1, 4): P(f"v_bitop3_b32 v8, v13, v{b+4*k}, v8 bitop3:0xbe")
        P("v_cmp_lt_u32 vcc, s17, v8")
    ol, ocheck = stream(32, ochk, 0)
    if ODELAY: P(f"s_nop {ODELAY-1}")
    nis = NO0
    for q in range(nis): P(ol(q))
    def bstep(i):
        q, t = seq[i]
        xr = f"v[{X+4*q}:{X+4*q+3}]"; w = f"a[{32+4*(i%8)}:{35+4*(i%8)}]"
        ow = 1 if i % 2 == 0 else 0
        if t == 0: mm(A1, w, xr, False, ow)
        else: mm(AD, xr, w, False, ow)
        if i + PF < len(seq): rdb(seq[i + PF][0], seq[i + PF][1], (i + PF) % 8)
    FT = T + 8
    fc = f"""v_lshrrev_b32 v{FT}, 1, v5
    v_and_b32 v9, 1, v5
    v_cvt_f32_u32 v{FT}, v{FT}
    v_cvt_f32_u32 v{FT+1}, v9
    v_cvt_f32_u32 v{FT+2}, s45
    v_mul_f32 v{FT}, {f32(1/2048)}, v{FT}
    v_mul_f32 v{FT+1}, 0x3e800000, v{FT+1}
    v_cmp_eq_u32 s[32:33], 1, v5
    v_fmac_f32 v{FT+1}, v{FT}, v{FT+2}
    v_mul_f32 v{FT}, {f32(64.0)}, v{FT}
    v_lshlrev_b32 v9, 2, v4
    v_cvt_f32_u32 v9, v9
    v_cndmask_b32 v{FT}, v{FT}, 0.5, s[32:33]
    v_cndmask_b32 v{FT+1}, v{FT+1}, 0, s[32:33]
    v_fmac_f32 v{FT+1}, v{FT}, v9""".split("\n")
    for e in range(8):
        t = FT + 4 + 2 * (e % 2)
        for k in range(2):
            i = 2 * e + k
            ds = 16 * (i // 8) + 8 * ((i % 8) // 4) + i % 4
            fc.append(f"v_mov_b32 v{t+k}, v{FT+1}" if ds == 0 else f"v_fmamk_f32 v{t+k}, v{FT}, {f32(float(ds))}, v{FT+1}")
        fc += [f"v_cos_f32 v{t}, v{t}", "", f"v_cos_f32 v{t+1}, v{t+1}", ""]
        if e: fc += [f"v_cvt_pk_bf16_f32 v{tp}, v{tp}, v{tp+1}", f"v_accvgpr_write_b32 a{A_F+e-1}, v{tp}"]
        tp = t
    fc += [f"v_cvt_pk_bf16_f32 v{tp}, v{tp}, v{tp+1}", f"v_accvgpr_write_b32 a{A_F+7}, v{tp}"]
    take(fc, NFC)
    ocheck(0, [(q, None) for q in range(nis)])
    st('m2')
    for i in range(nfirst):
        bstep(i)
        nq, nt = seq[i + 1]
        if nt == 0 and nq % 4 == 0: ocheck(nq // 4, [(q, None) for q in range(nis)])
        elif nis < 32 and (i % 2 == 0 or i < 8): P(ol(nis)); nis += 1
        else: take(fc, 3)
    assert nis == 32 and not fc
    st('m2')
    nxt = nfirst
    bstep(nxt); nxt += 1
    bstep(nxt); nxt += 1
    U = T
    ep = [f"v_add_f32 v{U}, v{A1}, v{A1+1}", f"v_mul_f32 v{U+2}, v{A1}, v{A1}", f"v_add_f32 v{U+1}, v{A1+2}, v{A1+3}", f"v_mul_f32 v{U+3}, v{A1+1}, v{A1+1}"]
    for i in range(2, 16):
        if i >= 4: ep.append(f"v_add_f32 v{U+i%2}, v{U+i%2}, v{A1+i}")
        ep.append(f"v_fmac_f32 v{U+2+i%2}, v{A1+i}, v{A1+i}")
    ep += [f"v_add_f32 v{U}, v{U}, v{U+1}", f"v_add_f32 v{U+2}, v{U+2}, v{U+3}"]
    for i, e in enumerate(ep):
        P(e)
        if i % 8 == 7: bstep(nxt); nxt += 1
    P(f"v_permlane32_swap_b32 v{U}, v{U+2}\n v_add_f32 v{U}, v{U}, v{U+2}")
    by_mode(lambda fl, U=U: P(f"buffer_store_dword v{U}, v7, s[4:7], s55 offen{fl}"))
    while nxt < len(seq): bstep(nxt); nxt += 1
    P("s_barrier")
    st('m2')
    def sb_load():
        for e in range(4): P(f"buffer_load_dwordx4 v[{X+4*e}:{X+4*e+3}], v2, s[4:7], s16 offen offset:{1024*e} sc1")
    def sb_cond():
        for l in red4(X): P(l)
        P(f"v_cmp_u_f32 vcc, v{X}, v{X}\n v_mov_b32 v{X+1}, v{X}\n v_mov_b32 v{T}, {f32(1e-5)}")
    spin(sb_load, sb_cond, 0x10000)
    st('m2')
    P(f"""
    v_permlane32_swap_b32 v{X}, v{X+1}
    v_mul_f32 v{X}, {f32(1/448)}, v{X}
    v_fmac_f32 v{T}, {f32(1/448)}, v{X+1}
    v_fma_f32 v{T}, -v{X}, v{X}, v{T}
    v_rsq_f32 v{T}, v{T}
    s_nop 0
    ds_write_b32 v{PK+8}, v{T}
    """)
    for i in range(4): P(f"ds_read_b128 v[{T+4+4*i}:{T+7+4*i}], v{PK+9} offset:{32*i}")
    for i in range(8):
        P(f"v_pk_mul_f32 v[{AD+2*i}:{AD+2*i+1}], v[{AD+2*i}:{AD+2*i+1}], v[{T+4+2*i}:{T+5+2*i}]")
        P(f"v_cvt_pk_bf16_f32 v{PK+i}, v{AD+2*i}, v{AD+2*i+1}")
    mm(AV, f"v[{PK}:{PK+3}]", f"a[{A_F}:{A_F+3}]", True)
    mm(AV, f"v[{PK+4}:{PK+7}]", f"a[{A_F+4}:{A_F+7}]", False)
    P(f"""
    v_lshlrev_b32 v9, 2, v5
    s_and_b32 s12, s10, 1
    s_lshl_b32 s12, s12, 1
    s_cmp_eq_u32 s9, 0
    s_cselect_b32 s13, 1, 2
    s_cmp_lt_u32 s10, 2
    s_cselect_b32 s13, 0, s13
    s_cselect_b32 s16, 1.0, -1.0
    s_add_u32 s12, s12, s13
    v_add_u32 v9, s12, v9
    v_cvt_f32_u32 v9, v9
    """)
    for u in range(2):
        for k in range(4 * u, 4 * u + 4): P(f"v_cvt_pk_bf16_f32 v{T+k}, v{AV+2*k}, v{AV+2*k+1}")
        P(f"buffer_store_dwordx4 v[{T+4*u}:{T+4*u+3}], v6, s[20:23], s44 offen offset:{64*u} sc1")
    st('m2')
    P(f"""
    v_mul_f32 v9, {f32(1/128)}, v9
    v_lshlrev_b32 v8, 3, v4
    v_cvt_f32_u32 v8, v8
    v_mul_f32 v8, v9, v8
    s_cmp_eq_u32 s9, 0
    s_cselect_b32 s16, 0, s16          ; epsilon
    s_mul_i32 s14, s9, {GSTR}
    s_lshl_b32 s12, s8, 13
    s_add_u32 s14, s14, s12
    s_lshl_b32 s12, s10, 11
    s_add_u32 s14, s14, s12
    s_add_u32 s12, s12, {GL}
    v_add_u32 v3, s12, v2
    """)
    CC = X + 16
    def g_load(x=""):
        for i in range(2): P(f"buffer_load_dwordx4 v[{X+4*i}:{X+4*i+3}], v2, s[20:23], s14 offen offset:{1024*i} sc1{x}")
    for k in range(4):
        for i in range(0, 8, 2):
            t = T + 16 + 8 * ((i // 2) % 2)
            for e in range(2):
                ds = 16 * k + i + e
                P(f"v_mov_b32 v{t+e}, v8" if ds == 0 else f"v_fmamk_f32 v{t+e}, v9, {f32(float(ds))}, v8")
            P(f"""
            v_cos_f32 v{t+2}, v{t}
            v_cos_f32 v{t+3}, v{t+1}
            v_sin_f32 v{t+4}, v{t}
            v_sin_f32 v{t+5}, v{t+1}
            v_cvt_pk_bf16_f32 v{CC+4*k+i//2}, v{t+2}, v{t+3}
            v_cvt_pk_bf16_f32 v{CC+16+4*k+i//2}, v{t+4}, v{t+5}
            """)
    P(f"""
    v_bfe_u32 v6, v1, 2, 2
    v_lshl_add_u32 v6, v4, 3, v6
    v_lshlrev_b32 v6, 7, v6
    v_and_b32 v8, 1, v1
    v_lshl_add_u32 v6, v8, 6, v6
    v_bfe_u32 v8, v1, 4, 1
    v_mad_u32_u24 v6, v8, 48, v6
    v_and_b32 v8, 2, v1
    v_lshl_add_u32 v6, v8, 2, v6
    v_and_b32 v8, 8, v1
    v_lshlrev_b32 v8, 2, v8
    s_and_b32 s13, s13, 1
    s_lshl_b32 s13, s13, 4
    v_xor_b32 v8, s13, v8
    v_xor_b32 v6, v6, v8
    v_add_u32 v6, {GL}, v6
    v_xor_b32 v8, 32, v6
    v_lshlrev_b32 v9, 4, v5
    v_lshl_add_u32 v9, v4, 10, v9
    s_mul_i32 s13, s11, {BLK}
    s_add_u32 s13, s13, {XI}
    s_lshl_b32 s12, s8, 11
    s_add_u32 s44, s13, s12
    v_mov_b32 v{T}, v{A1}
    v_and_b32 v10, 30, v5
    v_add_u32 v10, v10, v4
    v_xor_b32 v11, 1, v10
    s_lshl_b32 s12, s8, 6
    s_sub_u32 s12, 866, s12
    v_mul_lo_u32 v12, v4, s12
    s_lshl_b32 s12, s8, 5
    v_and_b32 v{T+1}, 16, v2
    v_add3_u32 v12, v12, v{T+1}, s12
    v_mov_b32 v{T+1}, 57344
    v_mad_u32_u24 v10, v10, v{T+1}, v12
    v_mad_u32_u24 v11, v11, v{T+1}, v12
    """)
    g_load()
    Lw = P.label("nowd")
    P(f"s_cmp_eq_u32 s40, 0\n s_cbranch_scc1 {Lw} ;T")
    for b in wd_gen(P, False, AK, X + 48): P(b)
    P.place(Lw, True)
    st('m2')
    def g_cond():
        P(f"""
        v_max3_u32 v{X+8}, v{X}, v{X+1}, v{X+2}
        v_max3_u32 v{X+9}, v{X+3}, v{X+4}, v{X+5}
        v_max3_u32 v{X+8}, v{X+8}, v{X+6}, v{X+7}
        v_max_u32 v{X+8}, v{X+8}, v{X+9}
        v_cmp_eq_u32 vcc, -1, v{X+8}
        """)
    retry(g_load, g_cond, 0x10000, SL3, inline=True)
    for i in range(2): P(f"ds_write_b128 v3, v[{X+4*i}:{X+4*i+3}] offset:{1024*i}")
    P("s_waitcnt lgkmcnt(0)\n s_barrier")
    st('m2')
    for k in range(4):
        for mu in range(2):
            for rd in range(2):
                r = 16 * mu + 4 * k + 2 * rd
                P(f"ds_read_b64_tr_b16 a[{r}:{r+1}], v{6+2*mu} offset:{2048*k+512*rd}")
    P(f"""
    s_add_u32 s20, s20, {LSZ}
    s_addc_u32 s21, s21, 0
    s_cmp_eq_u32 s8, 0
    s_cselect_b32 s32, -1, 0
    s_mov_b32 s33, 0
    """)
    for k in range(4):
        for mu in range(2):
            mm(AK + 16 * mu, f"a[{16*mu+4*k}:{16*mu+4*k+3}]", f"v[{CC+16*mu+4*k}:{CC+16*mu+4*k+3}]", k == 0)
    pr = lambda r: f"v[{r}:{r+1}]"
    for i in range(0, 8, 2):
        P(f"v_pk_fma_f32 {pr(AK+i)}, {pr(AV+8+i)}, s[16:17], {pr(AK+i)} op_sel_hi:[1,0,1]")
        P(f"v_pk_fma_f32 {pr(AV+i)}, {pr(AK+8+i)}, s[16:17], {pr(AV+i)} op_sel_hi:[1,0,1] neg_lo:[0,0,1] neg_hi:[0,0,1]")
    for i in range(0, 8, 2):
        P(f"v_pk_add_f32 {pr(A1+i)}, {pr(A1+i)}, {pr(AK+i)}")
        P(f"v_pk_add_f32 {pr(A1+14-i)}, {pr(A1+14-i)}, {pr(AK+i)} op_sel:[0,1] op_sel_hi:[1,0]")
    for i in range(0, 8, 2):
        P(f"v_pk_add_f32 {pr(A1+i)}, {pr(A1+i)}, {pr(AV+i)} neg_lo:[0,1] neg_hi:[0,1]")
    P(f"v_cndmask_b32 v{A1}, v{A1}, v{T}, s[32:33]")
    for i in range(0, 8, 2):
        P(f"v_pk_add_f32 {pr(A1+14-i)}, {pr(A1+14-i)}, {pr(AV+i)} op_sel:[0,1] op_sel_hi:[1,0]")
    for i in range(8): P(f"v_cvt_pk_bf16_f32 v{PK+i}, v{A1+2*i}, v{A1+2*i+1}")
    st('all')
    Lfinal = P.label("final")
    P(f"s_cmp_eq_u32 s40, 0\n s_cbranch_scc1 {Lfinal}")
    def pub_x(fl):
        for i in range(2): P(f"buffer_store_dwordx4 v[{PK+4*i}:{PK+4*i+3}], v9, s[4:7], s44 offen offset:{512*i}{fl}")
        d = T
        P(f"v_pk_add_f32 v[{d}:{d+1}], v[{A1}:{A1+1}], v[{A1+2}:{A1+3}]\n v_pk_mul_f32 v[{d+2}:{d+3}], v[{A1}:{A1+1}], v[{A1}:{A1+1}]")
        for i in range(1, 8):
            if i > 1: P(f"v_pk_add_f32 v[{d}:{d+1}], v[{d}:{d+1}], v[{A1+2*i}:{A1+2*i+1}]")
            P(f"v_pk_fma_f32 v[{d+2}:{d+3}], v[{A1+2*i}:{A1+2*i+1}], v[{A1+2*i}:{A1+2*i+1}], v[{d+2}:{d+3}]")
        P(f"v_add_f32 v{d}, v{d}, v{d+1}\n v_add_f32 v{d+2}, v{d+2}, v{d+3}\n v_permlane32_swap_b32 v{d}, v{d+2}\n v_add_f32 v{d}, v{d}, v{d+2}")
        P(f"buffer_store_dword v{d}, v7, s[4:7], s53 offen{fl}")
    by_mode(pub_x)
    probe('l1end')
    st.flush(T + 40, T + 41); st.n = 0
    for i in range(16): P(f"v_accvgpr_write_b32 a{A_RES+i}, v{A1+i}")
    Ljoin = P.label("join")
    P.place(Ljoin)
    st()
    P(f"""
    s_load_dwordx2 s[24:25], s[0:1], 72
    s_mov_b32 s40, 0
    s_mov_b32 s51, 0
    s_mov_b32 s52, 0
    v_mul_u32_u24 v6, {433*64}, v4
    v_add_u32 v15, v15, v6
    v_lshlrev_b32 v6, 10, v4
    v_sub_u32 v14, 512, v6
    v_mov_b32 v3, v15
    v_xor_b32 v13, 0x10000, v13
    """)
    def xchk(c):
        b = X + 16 * c + 3
        P(f"v_max3_u32 v8, v{b}, v{b+4}, v{b+8}\n v_max_u32 v8, v8, v{b+12}\n v_cmp_eq_u32 vcc, -1, v8")
    xl, xcheck = stream(28, xchk, 0)
    nis = NX2
    for q in range(nis): P(xl(q))
    def rd1(q, t):
        for rd in range(2):
            P(f"ds_read_b64_tr_b16 a[{8*(q%4)+4*t+2*rd}:{8*(q%4)+4*t+2*rd+1}], v3 offset:{t*WV+256*rd}")
        if q < 27 and t: P("v_add_u32 v3, v3, v14")
    P("s_waitcnt lgkmcnt(0)")
    for q in range(3): rd1(q, 0); rd1(q, 1)
    for l in kaddr: P(l)
    st()
    xh = [(q, None) for q in range(nis)]
    xcheck(0, list(xh))
    st()
    sl = [f"buffer_load_dwordx4 v[{T+8+4*e}:{T+11+4*e}], v2, s[4:7], s54 offen offset:{1024*e} sc1" for e in range(4)]
    slq = list(sl)
    r4 = red4(T + 8); sf = stats_fin(T + 8)
    def s0re():
        for l in sl + red4(T + 8): P(l)
    for q in range(28):
        if q % 4 == 0: st('p1')
        xr = f"v[{X+4*q}:{X+4*q+3}]"
        b = 8 * (q % 4)
        def vm():
            nonlocal nis
            if nis == 16 and slq: xh.append((None, slq[0])); P(slq.pop(0))
            elif nis < 28: xh.append((nis, None)); P(xl(nis)); nis += 1
            else: return False
            return True
        def fillers(n):
            if q < 17: return
            if r4:
                take(r4, n)
                if not r4: retry(s0re, lambda: P(f"v_cmp_u_f32 vcc, v{T+8}, v{T+8}"), 0x40000, 2)
            else: take(sf, n)
        mm(AK, f"a[{b}:{b+3}]", xr, q == 0, 2)
        if q + 3 < 28: rd1(q + 3, 0)
        if not vm(): fillers(3)
        if q in (25, 26):
            assert len(sf) <= 4
            mm(AK, f"a[{A_CS+4*(q-25)}:{A_CS+3+4*(q-25)}]", f"a[{A_NM}:{A_NM+3}]", False)
        if q == 20: P("s_barrier")
        mm(AV, f"a[{b+4}:{b+7}]", xr, q == 0)
        if q + 3 < 28: rd1(q + 3, 1)
        if q % 4 == 3 and q < 27: xcheck(q // 4 + 1, list(xh))
        elif q < 8: vm()
        else: fillers(2)
    assert not sf and nis == 28
    for k in range(2): mm(AV, f"a[{A_CS+8+4*k}:{A_CS+11+4*k}]", f"a[{A_NM}:{A_NM+3}]", False)
    st()
    k_epilogue([])
    P(f"s_waitcnt lgkmcnt(0)\n s_branch {common}")
    P.place(Lspare)
    Lwb = P.label("wbl")
    def wbl():
        P.place(Lwb)
        st.flush(T + 40, T + 41, True)
        P("s_endpgm")
    tail.append(wbl)
    if TG:
        P(f"""
        v_and_b32 v3, 15, v1
        v_mul_u32_u24 v3, {GSTR}, v3
        v_lshrrev_b32 v6, 4, v1
        v_lshl_add_u32 v7, v6, 13, v3
        v_min_u32 v6, 2, v6
        v_lshl_add_u32 v3, v6, 13, v3
        s_and_b32 s12, s8, 1
        s_mul_i32 s12, s12, {7*8192}
        s_lshl_b32 s14, s45, 7
        s_add_u32 s12, s12, s14
        buffer_load_dword v0, v7, s[20:23], s12 offen sc1 ;NW
        s_add_u32 s12, s12, {4*8192}
        buffer_load_dword v0, v3, s[20:23], s12 offen sc1 ;NW
        """)
    P(f"""
    s_cmp_eq_u32 s40, 0
    s_cbranch_scc1 {Lwb}
    s_add_u32 s20, s20, {LSZ}
    s_addc_u32 s21, s21, 0
    v_lshrrev_b32 v3, 3, v1
    v_mul_u32_u24 v3, {GSTR}, v3
    v_and_b32 v6, 0x70, v2
    v_add_u32 v3, v3, v6
    v_add_u32 v6, {8*GSTR}, v3
    s_and_b32 s12, s8, 1
    s_mul_i32 s12, s12, {7*8192}
    s_lshl_b32 s14, s45, 7
    s_add_u32 s12, s12, s14
    v_mov_b32 v{T+8}, -1
    v_mov_b32 v{T+9}, -1
    v_mov_b32 v{T+10}, -1
    v_mov_b32 v{T+11}, -1
    """)
    for i in range(0 if NO_SP else 7):
        P(f"buffer_store_dwordx4 v[{T+8}:{T+11}], v3, s[20:23], s12 offen sc1\n buffer_store_dwordx4 v[{T+8}:{T+11}], v6, s[20:23], s12 offen sc1\n s_add_u32 s12, s12, 8192")
    st.flush(T + 40, T + 41)
    P(f"v_lshrrev_b32 v6, 2, v1\n v_lshlrev_b32 v6, 11, v6\n v_and_b32 v7, 0x30, v2\n v_add_u32 v6, v6, v7")
    spin(lambda: P(f"buffer_load_dword v7, v6, s[4:7], s13 offen offset:12 sc1"),
         lambda: P(f"v_xor_b32 v7, v13, v7\n v_cmp_lt_u32 vcc, s17, v7"), 0x100000, 8)
    P(f"""
    s_and_b32 s12, s8, 1
    s_mul_i32 s12, s12, {BLK//2}
    s_mul_i32 s13, s11, {BLK}
    s_add_u32 s13, s13, {XI}
    s_add_u32 s12, s12, s13
    v_min_u32 v6, 55, v1
    v_lshlrev_b32 v6, 7, v6
    buffer_load_dword v0, v6, s[4:7], s12 offen sc1 ;NW
    s_add_u32 s12, s12, {56*128}
    buffer_load_dword v0, v6, s[4:7], s12 offen sc1 ;NW
    v_lshlrev_b32 v6, 7, v5
    buffer_load_dword v0, v6, s[4:7], s54 offen sc1 ;NW
    """)
    if TK:
        P(f"""
        v_lshrrev_b32 v6, 3, v1
        v_and_b32 v7, 7, v1
        v_lshlrev_b32 v3, 12, v7
        v_lshlrev_b32 v7, 7, v7
        v_lshl_add_u32 v6, v6, 16, v7
        s_and_b32 s12, s8, 1
        s_mul_i32 s12, s12, 7
        s_sub_u32 s12, 14, s12
        s_lshl_b32 s14, s12, 16
        s_sub_u32 s14, s41, s14
        buffer_load_dword v0, v6, s[20:23], s14 offen sc1 ;NW
        s_lshl_b32 s14, s12, 12
        s_sub_u32 s14, s46, s14
        buffer_load_dword v0, v3, s[20:23], s14 offen sc1 ;NW
        """)
    P(f"""
    v_mov_b32 v6, 0
    v_lshlrev_b32 v7, 2, v1
    s_waitcnt vmcnt(0)
    """)
    by_mode(lambda fl: P(f"buffer_store_dword v6, v7, s[4:7], s53 offen{fl}"))
    P(f"v_min_u32 v6, 13, v1\n v_lshlrev_b32 v6, 8, v6")
    spin(lambda: P(f"buffer_load_dword v7, v6, s[4:7], s54 offen sc1"),
         lambda: P(f"v_cmp_eq_u32 vcc, -1, v7"), 0x100000, 4)
    P(f"s_waitcnt lgkmcnt(0)\n s_branch {Ljoin}")
    P.place(Lfinal)
    Lg = P.label("gen")
    for i in range(4): P(f"v_permlane32_swap_b32 v{PK+i}, v{PK+4+i}")
    P(f"""
    s_cmp_lg_u32 s8, 0
    s_cbranch_scc1 {Lg}
    s_mov_b32 exec_lo, 0
    v_mul_u32_u24 v8, 57344, v5
    buffer_store_short_d16_hi v{PK+3}, v8, s[24:27], s56 offen offset:448
    v_and_b32 v6, 1, v1
    v_lshlrev_b32 v6, 1, v6
    v_sub_u32 v10, v10, v6
    v_sub_u32 v11, v11, v6
    v_alignbit_b32 v{PK+3}, v{PK+3}, v{PK+2}, 16
    v_alignbit_b32 v{PK+2}, v{PK+2}, v{PK+1}, 16
    v_alignbit_b32 v{PK+1}, v{PK+1}, v{PK}, 16
    v_alignbit_b32 v{PK}, v{PK}, v{PK+7}, 16
    s_mov_b32 exec_lo, -1
    s_or_b32 s12, s2, s10
    s_cmp_eq_u32 s12, 0
    s_cselect_b32 s12, 0, {HUGE}
    v_mov_b32 v{T+8}, s48
    v_mov_b32 v{T+9}, s49
    v_mov_b32 v{T+10}, s12
    buffer_store_dwordx2 v[{T+8}:{T+9}], v{T+10}, s[4:7], 0 offen
    """)
    P.place(Lg)
    P("s_mov_b32 vcc_lo, 0x55555555\n s_mov_b32 vcc_hi, 0xaaaaaaaa")
    for i in range(4): P(f"v_cndmask_b32_dpp v{T+i}, v{PK+4+i}, v{PK+i}, vcc quad_perm:[1,0,3,2] row_mask:0xf bank_mask:0xf")
    P(f"s_not_b64 vcc, vcc\n buffer_store_dwordx4 v[{T}:{T+3}], v10, s[24:27], s56 offen")
    for i in range(4): P(f"v_cndmask_b32_dpp v{T+4+i}, v{PK+i}, v{PK+4+i}, vcc quad_perm:[1,0,3,2] row_mask:0xf bank_mask:0xf")
    P(f"buffer_store_dwordx4 v[{T+4}:{T+7}], v11, s[24:27], s56 offen")
    st.flush(T + 40, T + 41, True)
    if PROBE:
        probe('end')
        Lz = P.label("pz")
        P("s_waitcnt lgkmcnt(0)")
        if PROBE[0] == 'stamp': P("s_sub_u32 s70, s68, s64\n s_mul_i32 s70, s70, 10\n s_add_u32 s70, s70, 10000")
        else: P(f"s_mov_b32 s70, {PROBE[1]}")
        P.place(Lz)
        P(f"{'s_memtime' if PROBE[0] == 'cyc' else 's_memrealtime'} s[72:73]\n s_waitcnt lgkmcnt(0)\n s_sub_u32 s72, s72, s{66 if PROBE[0] == 'cyc' else 64}\n s_cmp_lt_u32 s72, s70\n s_cbranch_scc1 {Lz}")
    P.place(end)
    P("s_endpgm")
    i = 0
    while i < len(tail):
        tail[i](); i += 1
    return P

def build(upto=99, as_list=True):
    P = gen()
    name = "m_kernel" if as_list else NAME
    if as_list: o = f"; @launch kernel={name} grid=(256,1,1) block=(256,1,1) lds={LDS_TOTAL}\n"
    else: o = f"; @launch grid=(256,1,1) block=(256,1,1) lds={LDS_TOTAL}\n"
    o += '.amdgcn_target "amdgcn-amd-amdhsa--gfx950"\n.text\n'
    o += kernel_text(name, P.finalize())
    o += f"L_codeend:\n"
    o += '.section .rodata,"a"\n'
    o += descriptor(name, 256, NAGPR, 102)
    return o

if __name__ == "__main__":
    if len(sys.argv) > 2 and sys.argv[2] == "diag": DIAG = True
    if len(sys.argv) > 3: PROBE = (sys.argv[2], sys.argv[3])
    open(sys.argv[1], "w").write(build(as_list=False))
```
